```python
import torch

def _softmax(x, axis=-1):
    return torch.softmax(x, dim=axis)
def _gelu(x):
    return torch.nn.functional.gelu(x, approximate="tanh")
def _silu(x):
    return torch.nn.functional.silu(x)
def _sigmoid(x):
    return torch.sigmoid(x)
def _layernorm(x, axis=-1, eps=1e-5):
    m = x.mean(dim=axis, keepdim=True)
    v = x.var(dim=axis, keepdim=True, unbiased=False)
    return (x - m) / torch.sqrt(v + eps)
def _scatter_add(tgt, idx, src, axis=0):
    return tgt.clone().index_add_(axis, idx, src)
def _segment_sum(src, seg, n):
    out = torch.zeros((n,) + src.shape[1:], dtype=src.dtype)
    return out.index_add_(0, seg, src)
def _pad(x, pw):
    flat = tuple(v for pair in reversed(pw) for v in pair)
    return torch.nn.functional.pad(x, flat)

kernel_name = 'standalone__linear_kernel_rfa__decode'

def setup_inputs():

    _w = (lambda a: (lambda t: t.to(torch.bfloat16) if t.is_floating_point() else t)(torch.as_tensor(a)))
    B, H, Sq, Sk, D, M = 2, 32, 1, 8192, 128, 8
    return {
        "q": _w((lambda *s: torch.randn(*s, dtype=torch.bfloat16) * 0.4)(B, H, Sq, D)),
        "k": _w((lambda *s: torch.randn(*s, dtype=torch.bfloat16) * 1.6)(B, H, Sk, D)),
        "v": _w((lambda *s: torch.randn(*s, dtype=torch.bfloat16) * 1.6)(B, H, Sk, D)),
        "omega": _w((lambda *s: torch.randn(*s, dtype=torch.bfloat16) * 1.6)(M, D)),
    }

def reference(q, k, v, omega):
    d = q.shape[-1]
    m = omega.shape[0]
    scale = float(d) ** -0.25
    qs = q * scale
    ks = k * scale
    q_proj = torch.einsum("bhsd,md->bhsm", qs, omega)
    k_proj = torch.einsum("bhsd,md->bhsm", ks, omega)
    q_sq = 0.5 * torch.einsum("bhsd,bhsd->bhs", qs, qs)[..., None]
    k_sq = 0.5 * torch.einsum("bhsd,bhsd->bhs", ks, ks)[..., None]
    inv_sqrt_m = float(m) ** -0.5
    phi_q = torch.exp(q_proj - q_sq) * inv_sqrt_m + 1e-6
    phi_k = torch.exp(k_proj - k_sq) * inv_sqrt_m + 1e-6
    kv = torch.einsum("bhsm,bhsd->bhmd", phi_k, v)
    z  = torch.einsum("bhsm->bhm", phi_k)
    num = torch.einsum("bhqm,bhmd->bhqd", phi_q, kv)
    den = torch.einsum("bhqm,bhm->bhq", phi_q, z)[..., None] + 1e-6
    return num / den
```

```python
import sys, struct

def f2u(x): return struct.unpack("<I", struct.pack("<f", x))[0]

HEADER = """; Kernarg layout for this problem (56 bytes, ptrs only, base s[0:1]):
"""

def gen(FLAGS="nt", STAMP=0, KFLAGS=None):
    if KFLAGS is None: KFLAGS = FLAGS
    L = []
    A = L.append
    NWG = 256
    A(HEADER + f"; @launch grid=({NWG},1,1) block=(256,1,1) lds=4096")
    A('.amdgcn_target "amdgcn-amd-amdhsa--gfx950"\n.text\n.globl standalone__linear_kernel_rfa__decode_kernel\n.p2align 8\n.type standalone__linear_kernel_rfa__decode_kernel,@function\nstandalone__linear_kernel_rfa__decode_kernel:')
    sK, sV, sCNT, sWAVE, sHEAD = "s32", "s33", "s40", "s3", "s41"
    sSC = "s[34:35]"; sMASK = "s36"; sL2E = "s[38:39]"; sISM = "s[42:43]"; sEPS = "s[44:45]"
    KSRD, VSRD, OSRD, QSRD = "s[20:23]", "s[24:27]", "s[28:31]", "s[48:51]"
    vKoff, vVoff, vIlo, vIhi, vMA0, vMA1 = "v1", "v2", "v3", "v4", "v5", "v6"
    vM = ["v7", "v8", "v9", "v10"]; vDEN = "v11"; vPQ = ["v12", "v13"]
    AREG = 14
    P, GA, GB, ACC, T, KR = 20, 24, 28, 32, 48, 64
    VR, OMA, OMB = 0, 64, 80
    def v(i): return f"v{i}"
    def vr(i, n): return f"v[{i}:{i+n-1}]"
    def ar(i, n): return f"a[{i}:{i+n-1}]"

    A(f"s_cmp_ge_u32 s2, {NWG}\ns_cbranch_scc1 L_end")
    if STAMP: A("s_memrealtime s[60:61]")
    A("s_load_dwordx8 s[4:11], s[0:1], 0\ns_load_dwordx4 s[12:15], s[0:1], 32\ns_load_dwordx2 s[16:17], s[0:1], 48")
    A("v_lshrrev_b32 v18, 6, v0\nv_and_b32 v0, 63, v0")
    A(f"v_and_b32 v19, 15, v0                ; n\nv_readfirstlane_b32 {sWAVE}, v18\nv_lshrrev_b32 v18, 4, v0             ; g")
    A(f"v_lshlrev_b32 {vKoff}, 8, v19\nv_lshl_add_u32 {vKoff}, v18, 4, {vKoff}\nv_lshlrev_b32 {vVoff}, 4, v0")
    A(f"v_xor_b32 v48, 0x800, {vKoff}\nv_lshlrev_b32 v49, 4, v18")
    A(f"s_lshl_b32 s18, s2, 19\ns_lshr_b32 {sHEAD}, s2, 2\ns_lshl_b32 {sK}, {sWAVE}, 12\ns_mov_b32 {sV}, 0x40000000\ns_lshl_b32 s19, {sHEAD}, 8")
    A("s_mov_b32 s22, 0x80000\ns_mov_b32 s23, 0x20000\ns_mov_b32 s26, 0x80000\ns_mov_b32 s27, 0x20000")
    A("s_mov_b32 s30, 2048\ns_mov_b32 s31, 0x20000\ns_mov_b32 s50, 16384\ns_mov_b32 s51, 0x20000")
    A("s_waitcnt lgkmcnt(0)")
    A("s_add_u32 s20, s6, s18\ns_addc_u32 s21, s7, 0\ns_add_u32 s24, s8, s18\ns_addc_u32 s25, s9, 0")
    A("s_mov_b32 s28, s10\ns_mov_b32 s29, s11\ns_mov_b32 s48, s4\ns_mov_b32 s49, s5")

    def loadK(slot):
        for c in range(4):
            A(f"buffer_load_dwordx4 {vr(KR+slot*16+c*4,4)}, {vKoff}, {KSRD}, {sK} offen offset:{c*64} {KFLAGS}")
        A(f"s_add_u32 {sK}, {sK}, 0x4000")
    def loadV(slot, adv=True):
        for b in range(4):
            A(f"buffer_load_dwordx4 {ar(VR+slot*16+b*4,4)}, {vVoff}, {VSRD}, {sV} offen offset:{b*1024} {FLAGS}")
        if adv: A(f"s_add_u32 {sV}, {sV}, 0x4000")

    loadK(0)
    for c in range(4): A(f"buffer_load_dwordx4 {vr(ACC+c*4,4)}, v49, {QSRD}, s19 offen offset:{c*64}")
    for c in range(4): A(f"buffer_load_dwordx4 {ar(OMA+c*4,4)}, {vKoff}, {OSRD}, 0 offen offset:{c*64}")
    for c in range(4): A(f"buffer_load_dwordx4 {ar(OMB+c*4,4)}, v48, {OSRD}, 0 offen offset:{c*64}")
    loadV(2, False); loadK(1); loadV(3, False)
    A(f"s_lshl_b32 {sV}, {sWAVE}, 12")
    loadK(2); loadV(0); loadK(3); loadV(1)
    sc = f2u(128.0 ** -0.25); l2e = f2u(1.4426950408889634); ism = f2u(8.0 ** -0.5); eps = f2u(1e-6)
    A(f"s_mov_b32 s34, {sc:#x}\ns_mov_b32 s35, {sc:#x}\ns_mov_b32 {sMASK}, 0xffff0000\ns_mov_b32 s38, {l2e:#x}\ns_mov_b32 s39, {l2e:#x}")
    A(f"s_mov_b32 s42, {ism:#x}\ns_mov_b32 s43, {ism:#x}\ns_mov_b32 s44, {eps:#x}\ns_mov_b32 s45, {eps:#x}\ns_mov_b32 {sCNT}, 8")
    A(f"v_and_b32 v48, 1, v0\nv_lshlrev_b32 {vIlo}, 5, v48\nv_and_b32 v49, 12, v0\nv_add3_u32 {vIlo}, {vIlo}, v49, v18\nv_lshlrev_b32 {vIlo}, 2, {vIlo}\nv_add_u32 {vIhi}, 64, {vIlo}")
    A(f"v_lshlrev_b32 v48, 4, v48\nv_mov_b32 v49, 0xffff\nv_lshlrev_b32 v48, v48, v49\nv_and_b32 v49, 2, v0\nv_cmp_ne_u32 vcc, 0, v49\ns_nop 1")
    A(f"v_cndmask_b32_e64 {vMA0}, v48, 0, vcc\nv_cndmask_b32_e64 {vMA1}, 0, v48, vcc")
    A(f"v_lshlrev_b32 v48, 2, v18\nv_sub_u32 v48, v19, v48")
    for r in range(4):
        A(f"v_cmp_eq_u32 vcc, {r}, v48\ns_nop 1\nv_cndmask_b32_e64 {vM[r]}, 0, -1, vcc")
    A(f"v_mov_b32 {vDEN}, 0")
    for i in range(4): A(f"v_mov_b32 {v(AREG+i)}, 0")

    def scale_slab_a(x):
        for i in range(4):
            A(f"v_lshlrev_b32 {v(T+2*i)}, 16, {v(x+i)}\nv_and_b32 {v(T+2*i+1)}, {sMASK}, {v(x+i)}")
    def scale_slab_b(x):
        for i in range(4): A(f"v_pk_mul_f32 {vr(T+2*i,2)}, {vr(T+2*i,2)}, {sSC}")
        for i in range(4): A(f"v_cvt_pk_bf16_f32 {v(x+i)}, {v(T+2*i)}, {v(T+2*i+1)}")
    def ktile(x, om, G, first, both=False):
        def mf(c):
            cP = "0" if (first and c == 0) else vr(P, 4)
            A(f"v_mfma_f32_16x16x32_bf16 {vr(P,4)}, {ar(om+c*4,4)}, {vr(x+c*4,4)}, {cP}")
            if both: A(f"v_mfma_f32_16x16x32_bf16 {vr(P,4)}, {ar(OMB+c*4,4)}, {vr(x+c*4,4)}, {vr(P,4)}")
            cG = "0" if c == 0 else vr(G, 4)
            A(f"v_mfma_f32_16x16x32_bf16 {vr(G,4)}, {vr(x+c*4,4)}, {vr(x+c*4,4)}, {cG}")
        for c in range(4):
            scale_slab_a(x + c*4)
            if c > 0: mf(c-1)
            scale_slab_b(x + c*4)
        A("s_nop 1")
        mf(3)
    def vtile(slot, i):
        for b in range(4):
            r = VR + slot*16 + b*4
            a0 = ACC + (b & 1)*8
            A(f"v_mfma_f32_4x4x4_16b_bf16 {vr(a0,4)}, {vr(AREG+2*i,2)}, {ar(r,2)}, {vr(a0,4)} cbsz:2 abid:{b}")
            A(f"v_mfma_f32_4x4x4_16b_bf16 {vr(a0+4,4)}, {vr(AREG+2*i,2)}, {ar(r+2,2)}, {vr(a0+4,4)} cbsz:2 abid:{b}")
    def rnd4():
        A(f"v_cvt_pk_bf16_f32 {v(T+4)}, {v(T)}, {v(T+1)}\nv_cvt_pk_bf16_f32 {v(T+5)}, {v(T+2)}, {v(T+3)}")
        unp4()
    def unp4():
        A(f"v_lshlrev_b32 {v(T)}, 16, {v(T+4)}\nv_and_b32 {v(T+1)}, {sMASK}, {v(T+4)}\nv_lshlrev_b32 {v(T+2)}, 16, {v(T+5)}\nv_and_b32 {v(T+3)}, {sMASK}, {v(T+5)}")
    def phi(S, d0, d1):
        A(f"v_cvt_pk_bf16_f32 {v(T+6)}, {S}, {S}")
        A(f"v_cvt_pk_bf16_f32 {v(T+4)}, {v(P)}, {v(P+1)}\nv_cvt_pk_bf16_f32 {v(T+5)}, {v(P+2)}, {v(P+3)}")
        A(f"v_and_b32 {v(T+6)}, {sMASK}, {v(T+6)}")
        unp4()
        for i in range(4): A(f"v_fma_f32 {v(T+i)}, {v(T+6)}, -0.5, {v(T+i)}")
        rnd4()
        A(f"v_pk_mul_f32 {vr(T,2)}, {vr(T,2)}, {sL2E}\nv_pk_mul_f32 {vr(T+2,2)}, {vr(T+2,2)}, {sL2E}")
        for i in range(4): A(f"v_exp_f32 {v(T+i)}, {v(T+i)}")
        rnd4()
        A(f"v_pk_mul_f32 {vr(T,2)}, {vr(T,2)}, {sISM}\nv_pk_mul_f32 {vr(T+2,2)}, {vr(T+2,2)}, {sISM}")
        rnd4()
        A(f"v_pk_add_f32 {vr(T,2)}, {vr(T,2)}, {sEPS}\nv_pk_add_f32 {vr(T+2,2)}, {vr(T+2,2)}, {sEPS}")
        A(f"v_cvt_pk_bf16_f32 {d0}, {v(T)}, {v(T+1)}\nv_cvt_pk_bf16_f32 {d1}, {v(T+2)}, {v(T+3)}")
    def elementwise():
        a, b = v(T+8), v(T+9)
        A(f"v_and_b32 {a}, {v(GA)}, {vM[0]}\nv_and_b32 {b}, {v(GB)}, {vM[0]}")
        for r in range(1, 4):
            A(f"v_and_or_b32 {a}, {v(GA+r)}, {vM[r]}, {a}\nv_and_or_b32 {b}, {v(GB+r)}, {vM[r]}, {b}")
        A(f"s_nop 1\nv_permlane32_swap_b32 {a}, {b}\nv_or_b32 {a}, {a}, {b}\nv_mov_b32 {b}, {a}\ns_nop 1\nv_permlane16_swap_b32 {a}, {b}\nv_or_b32 {a}, {a}, {b}")
        phi(a, v(T+10), v(T+11))
        w = v(T+12)
        A(f"v_dot2_f32_bf16 {w}, {v(T+10)}, {vPQ[0]}, 0\nv_dot2_f32_bf16 {w}, {v(T+11)}, {vPQ[1]}, {w}\ns_nop 2")
        A(f"ds_bpermute_b32 {v(T+13)}, {vIlo}, {w}\nds_bpermute_b32 {v(T+14)}, {vIhi}, {w}\ns_waitcnt lgkmcnt(0)")
        A(f"v_add_f32 {w}, {v(T+13)}, {v(T+14)}\nv_cvt_pk_bf16_f32 {w}, {w}, {w}\nv_and_b32 {v(T+13)}, {sMASK}, {w}\nv_add_f32 {vDEN}, {vDEN}, {v(T+13)}")
        for i in range(2):
            A(f"v_and_b32_dpp {v(AREG+2*i)}, {w}, {vMA0} quad_perm:[{i},{i},{i},{i}] row_mask:0xf bank_mask:0xf")
            A(f"v_and_b32_dpp {v(AREG+2*i+1)}, {w}, {vMA1} quad_perm:[{i},{i},{i},{i}] row_mask:0xf bank_mask:0xf")

    A("s_waitcnt vmcnt(28)")
    ktile(ACC, OMA, GA, True, both=True)
    A("s_nop 7")
    phi(v(GA), vPQ[0], vPQ[1])
    for i in range(16): A(f"v_mov_b32 {v(ACC+i)}, 0")
    A("s_nop 1")

    A(".p2align 6\nL_loop:")
    for p in range(2):
        A("s_waitcnt vmcnt(28)")
        ktile(KR + (2*p)*16, OMA, GA, True)
        loadK(2*p)
        A("s_waitcnt vmcnt(28)")
        vtile(2*(1-p), 0)
        loadV(2*(1-p))
        A("s_waitcnt vmcnt(28)")
        ktile(KR + (2*p+1)*16, OMB, GB, False)
        loadK(2*p+1)
        A("s_waitcnt vmcnt(28)")
        vtile(2*(1-p)+1, 1)
        loadV(2*(1-p)+1)
        elementwise()
    A(f"s_sub_u32 {sCNT}, {sCNT}, 1\ns_cmp_lg_u32 {sCNT}, 0\ns_cbranch_scc1 L_loop")
    A("s_waitcnt vmcnt(24)")
    vtile(2, 0)
    A("s_waitcnt vmcnt(16)")
    vtile(3, 1)
    if STAMP: A("s_memrealtime s[62:63]")
    for sh in (8, 4, 2, 1):
        A(f"v_add_f32_dpp {vDEN}, {vDEN}, {vDEN} row_ror:{sh} row_mask:0xf bank_mask:0xf\ns_nop 1")
    for r in range(8): A(f"v_add_f32 {v(ACC+r)}, {v(ACC+r)}, {v(ACC+8+r)}")
    A(f"s_lshl_b32 s18, {sWAVE}, 9\ns_lshl_b32 s19, {sWAVE}, 4\ns_add_u32 s19, s19, 2048")
    A(f"v_lshlrev_b32 v48, 5, v19\nv_lshl_add_u32 v48, v18, 3, v48\nv_add_u32 v48, s18, v48\nv_lshl_add_u32 v49, v18, 2, s19")
    for r in range(4): A(f"v_permlane32_swap_b32 {v(ACC+r)}, {v(ACC+4+r)}")
    for r in range(4): A(f"v_add_f32 {v(ACC+r)}, {v(ACC+r)}, {v(ACC+4+r)}")
    A("s_nop 1")
    for r in range(2): A(f"v_permlane16_swap_b32 {v(ACC+r)}, {v(ACC+2+r)}")
    for r in range(2): A(f"v_add_f32 {v(ACC+r)}, {v(ACC+r)}, {v(ACC+2+r)}")
    A(f"ds_write_b64 v48, {vr(ACC,2)}\nds_write_b32 v49, {vDEN}\ns_waitcnt lgkmcnt(0)\ns_barrier")
    A(f"s_cmp_lg_u32 {sWAVE}, 0\ns_cbranch_scc1 L_fin")
    A("v_lshlrev_b32 v48, 3, v0\nv_mov_b32 v49, 2048")
    for w in range(4): A(f"ds_read_b64 {vr(64+2*w,2)}, v48 offset:{w*512}")
    for w in range(4): A(f"ds_read_b128 {vr(72+4*w,4)}, v49 offset:{w*16}")
    A("s_lshl_b32 s18, s2, 10\ns_add_u32 s16, s16, s18\ns_addc_u32 s17, s17, 0")
    A("s_waitcnt lgkmcnt(4)")
    A("v_pk_add_f32 v[64:65], v[64:65], v[66:67]\nv_pk_add_f32 v[68:69], v[68:69], v[70:71]\nv_pk_add_f32 v[64:65], v[64:65], v[68:69]")
    A("s_waitcnt lgkmcnt(0)")
    A("v_pk_add_f32 v[72:73], v[72:73], v[74:75]\nv_pk_add_f32 v[76:77], v[76:77], v[78:79]\nv_pk_add_f32 v[80:81], v[80:81], v[82:83]\nv_pk_add_f32 v[84:85], v[84:85], v[86:87]")
    A("v_pk_add_f32 v[72:73], v[72:73], v[76:77]\nv_pk_add_f32 v[80:81], v[80:81], v[84:85]\nv_pk_add_f32 v[72:73], v[72:73], v[80:81]")
    A("v_add_f32 v66, v72, v73\nv_mul_f32 v66, 0.5, v66\nv_mov_b32 v67, 0")
    A(f"global_store_dwordx4 {vVoff}, v[64:67], s[16:17] sc1")
    A(f"s_lshl_b32 s19, {sHEAD}, 2\nv_mov_b32 v48, s19\nv_mov_b32 v49, 1")
    A("s_waitcnt vmcnt(0)")
    A("s_mov_b64 exec, 1\nglobal_atomic_add v50, v48, v49, s[14:15] sc0\ns_waitcnt vmcnt(0)\ns_mov_b64 exec, -1")
    A("v_readfirstlane_b32 s19, v50\ns_nop 3\ns_cmp_lg_u32 s19, 3\ns_cbranch_scc1 L_fin")
    A("s_and_b32 s18, s2, 3\ns_lshl_b32 s18, s18, 10\ns_sub_u32 s16, s16, s18\ns_subb_u32 s17, s17, 0")
    for w in range(4): A(f"global_load_dwordx4 {vr(64+4*w,4)}, {vVoff}, s[16:17] offset:{w*1024} sc1")
    A(f"s_lshl_b32 s18, {sHEAD}, 8\ns_add_u32 s12, s12, s18\ns_addc_u32 s13, s13, 0\nv_lshlrev_b32 v48, 2, v0")
    A("s_waitcnt vmcnt(0)")
    A("v_pk_add_f32 v[64:65], v[64:65], v[68:69]\nv_pk_add_f32 v[72:73], v[72:73], v[76:77]\nv_add_f32 v66, v66, v70\nv_add_f32 v74, v74, v78")
    A("v_pk_add_f32 v[64:65], v[64:65], v[72:73]\nv_add_f32 v66, v66, v74\nv_add_f32 v66, s44, v66\nv_rcp_f32 v66, v66\ns_nop 0")
    A("v_mul_f32 v64, v64, v66\nv_mul_f32 v65, v65, v66\nv_cvt_pk_bf16_f32 v64, v64, v65")
    A("global_store_dword v48, v64, s[12:13]")
    A("L_fin:")
    if STAMP:
        A("s_waitcnt vmcnt(0)\ns_memrealtime s[64:65]\ns_load_dwordx2 s[16:17], s[0:1], 48")
        A(f"s_lshl_b32 s19, s2, 2\ns_add_u32 s19, s19, {sWAVE}\ns_lshl_b32 s19, s19, 4")
        A("s_waitcnt lgkmcnt(0)\ns_add_u32 s16, s16, 0x10000000\ns_addc_u32 s17, s17, 0")
        e = "s62", "s63"
        if STAMP == 2: e = "s64", "s65"
        A(f"v_mov_b32 v4, s60\nv_mov_b32 v5, s61\nv_mov_b32 v6, {e[0]}\nv_mov_b32 v7, {e[1]}\nv_mov_b32 v1, s19")
        A("s_mov_b64 exec, 1\nglobal_store_dwordx4 v1, v[4:7], s[16:17]")
    A("L_end:\ns_endpgm")
    A(""".section .rodata,"a"
.p2align 6
.amdhsa_kernel standalone__linear_kernel_rfa__decode_kernel
  .amdhsa_next_free_vgpr 224
  .amdhsa_next_free_sgpr 72
  .amdhsa_accum_offset 128
  .amdhsa_group_segment_fixed_size 0
  .amdhsa_kernarg_size 56
  .amdhsa_user_sgpr_count 2
  .amdhsa_user_sgpr_kernarg_segment_ptr 1
  .amdhsa_system_sgpr_workgroup_id_x 1
.end_amdhsa_kernel""")
    return "\n".join(L) + "\n"

if __name__ == "__main__":
    out = sys.argv[1]
    kw = {}
    for x in sys.argv[2:]:
        k, val = x.split("=")
        kw[k] = int(val) if val.lstrip("-").isdigit() else val.replace("+", " ")
    open(out, "w").write(gen(**kw))
```

```python
import sys, struct

def f2u(x): return struct.unpack("<I", struct.pack("<f", x))[0]

HEADER = """; Kernarg layout for this problem (56 bytes, ptrs only, base s[0:1]):
"""

def gen(FLAGS="nt", STAMP=0, KFLAGS=None, PADTO=0, WGMAP=0, NORND=0):
    if KFLAGS is None: KFLAGS = FLAGS
    L = []
    A = L.append
    NWG = 256
    A(HEADER + f"; @launch grid=({NWG},1,1) block=(256,1,1) lds=4096")
    A('.amdgcn_target "amdgcn-amd-amdhsa--gfx950"\n.text\n.globl standalone__linear_kernel_rfa__decode_kernel\n.p2align 8\n.type standalone__linear_kernel_rfa__decode_kernel,@function\nstandalone__linear_kernel_rfa__decode_kernel:')
    sK, sV, sCNT, sWAVE, sHEAD = "s32", "s33", "s40", "s3", "s41"
    sSC = "s[34:35]"; sMASK = "s36"; sL2E = "s[38:39]"; sISM = "s[42:43]"; sEPS = "s[44:45]"
    KSRD, VSRD, OSRD, QSRD = "s[20:23]", "s[24:27]", "s[28:31]", "s[48:51]"
    vKoff, vVoff, vIlo, vIhi, vMA0, vMA1 = "v1", "v2", "v3", "v4", "v5", "v6"
    vM = ["v7", "v8", "v9", "v10"]; vDEN = "v11"; vPQ = ["v12", "v13"]
    AREG = 14
    P, GA, GB, ACC, T, KR = 20, 24, 28, 32, 48, 64
    VR, OMA, OMB = 0, 64, 80
    def v(i): return f"v{i}"
    def vr(i, n): return f"v[{i}:{i+n-1}]"
    def ar(i, n): return f"a[{i}:{i+n-1}]"

    A(f"s_cmp_ge_u32 s2, {NWG}\ns_cbranch_scc1 L_end")
    if STAMP or PADTO: A("s_memrealtime s[60:61]")
    if WGMAP: A("s_and_b32 s3, s2, 7\ns_lshl_b32 s3, s3, 5\ns_lshr_b32 s2, s2, 3\ns_add_u32 s2, s2, s3")
    A("s_load_dwordx8 s[4:11], s[0:1], 0\ns_load_dwordx4 s[12:15], s[0:1], 32\ns_load_dwordx2 s[16:17], s[0:1], 48")
    A("v_lshrrev_b32 v18, 6, v0\nv_and_b32 v0, 63, v0")
    A(f"v_and_b32 v19, 15, v0                ; n\nv_readfirstlane_b32 {sWAVE}, v18\nv_lshrrev_b32 v18, 4, v0             ; g")
    A(f"v_lshlrev_b32 {vKoff}, 8, v19\nv_lshl_add_u32 {vKoff}, v18, 4, {vKoff}\nv_lshlrev_b32 {vVoff}, 4, v0")
    A(f"v_xor_b32 v48, 0x800, {vKoff}\nv_lshlrev_b32 v49, 4, v18")
    A(f"s_lshl_b32 s18, s2, 19\ns_lshr_b32 {sHEAD}, s2, 2\ns_lshl_b32 {sK}, {sWAVE}, 12\ns_mov_b32 {sV}, 0x40000000\ns_lshl_b32 s19, {sHEAD}, 8")
    A("s_mov_b32 s22, 0x80000\ns_mov_b32 s23, 0x20000\ns_mov_b32 s26, 0x80000\ns_mov_b32 s27, 0x20000")
    A("s_mov_b32 s30, 2048\ns_mov_b32 s31, 0x20000\ns_mov_b32 s50, 16384\ns_mov_b32 s51, 0x20000")
    A("s_waitcnt lgkmcnt(0)")
    A("s_add_u32 s20, s6, s18\ns_addc_u32 s21, s7, 0\ns_add_u32 s24, s8, s18\ns_addc_u32 s25, s9, 0")
    A("s_mov_b32 s28, s10\ns_mov_b32 s29, s11\ns_mov_b32 s48, s4\ns_mov_b32 s49, s5")

    def loadK(slot):
        for c in range(4):
            A(f"buffer_load_dwordx4 {vr(KR+slot*16+c*4,4)}, {vKoff}, {KSRD}, {sK} offen offset:{c*64} {KFLAGS}")
        A(f"s_add_u32 {sK}, {sK}, 0x4000")
    def loadV(slot, adv=True):
        for b in range(4):
            A(f"buffer_load_dwordx4 {ar(VR+slot*16+b*4,4)}, {vVoff}, {VSRD}, {sV} offen offset:{b*1024} {FLAGS}")
        if adv: A(f"s_add_u32 {sV}, {sV}, 0x4000")

    loadK(0)
    for c in range(4): A(f"buffer_load_dwordx4 {vr(ACC+c*4,4)}, v49, {QSRD}, s19 offen offset:{c*64}")
    for c in range(4): A(f"buffer_load_dwordx4 {ar(OMA+c*4,4)}, {vKoff}, {OSRD}, 0 offen offset:{c*64}")
    for c in range(4): A(f"buffer_load_dwordx4 {ar(OMB+c*4,4)}, v48, {OSRD}, 0 offen offset:{c*64}")
    loadV(2, False); loadK(1); loadV(3, False)
    A(f"s_lshl_b32 {sV}, {sWAVE}, 12")
    loadK(2); loadV(0); loadK(3); loadV(1)
    sc = f2u(128.0 ** -0.25); l2e = f2u(1.4426950408889634); ism = f2u(8.0 ** -0.5); eps = f2u(1e-6)
    A(f"s_mov_b32 s34, {sc:#x}\ns_mov_b32 s35, {sc:#x}\ns_mov_b32 {sMASK}, 0xffff0000\ns_mov_b32 s38, {l2e:#x}\ns_mov_b32 s39, {l2e:#x}")
    A(f"s_mov_b32 s42, {ism:#x}\ns_mov_b32 s43, {ism:#x}\ns_mov_b32 s44, {eps:#x}\ns_mov_b32 s45, {eps:#x}\ns_mov_b32 {sCNT}, 8")
    A(f"v_and_b32 v48, 1, v0\nv_lshlrev_b32 {vIlo}, 5, v48\nv_and_b32 v49, 12, v0\nv_add3_u32 {vIlo}, {vIlo}, v49, v18\nv_lshlrev_b32 {vIlo}, 2, {vIlo}\nv_add_u32 {vIhi}, 64, {vIlo}")
    A(f"v_lshlrev_b32 v48, 4, v48\nv_mov_b32 v49, 0xffff\nv_lshlrev_b32 v48, v48, v49\nv_and_b32 v49, 2, v0\nv_cmp_ne_u32 vcc, 0, v49\ns_nop 1")
    A(f"v_cndmask_b32_e64 {vMA0}, v48, 0, vcc\nv_cndmask_b32_e64 {vMA1}, 0, v48, vcc")
    A(f"v_lshlrev_b32 v48, 2, v18\nv_sub_u32 v48, v19, v48")
    for r in range(4):
        A(f"v_cmp_eq_u32 vcc, {r}, v48\ns_nop 1\nv_cndmask_b32_e64 {vM[r]}, 0, -1, vcc")
    A(f"v_mov_b32 {vDEN}, 0")
    for i in range(4): A(f"v_mov_b32 {v(AREG+i)}, 0")

    def scale_slab_a(x):
        for i in range(4):
            A(f"v_lshlrev_b32 {v(T+2*i)}, 16, {v(x+i)}\nv_and_b32 {v(T+2*i+1)}, {sMASK}, {v(x+i)}")
    def scale_slab_b(x):
        for i in range(4): A(f"v_pk_mul_f32 {vr(T+2*i,2)}, {vr(T+2*i,2)}, {sSC}")
        for i in range(4): A(f"v_cvt_pk_bf16_f32 {v(x+i)}, {v(T+2*i)}, {v(T+2*i+1)}")
    def ktile(x, om, G, first, both=False):
        def mf(c):
            cP = "0" if (first and c == 0) else vr(P, 4)
            A(f"v_mfma_f32_16x16x32_bf16 {vr(P,4)}, {ar(om+c*4,4)}, {vr(x+c*4,4)}, {cP}")
            if both: A(f"v_mfma_f32_16x16x32_bf16 {vr(P,4)}, {ar(OMB+c*4,4)}, {vr(x+c*4,4)}, {vr(P,4)}")
            cG = "0" if c == 0 else vr(G, 4)
            A(f"v_mfma_f32_16x16x32_bf16 {vr(G,4)}, {vr(x+c*4,4)}, {vr(x+c*4,4)}, {cG}")
        for c in range(4):
            scale_slab_a(x + c*4)
            if c > 0: mf(c-1)
            scale_slab_b(x + c*4)
        A("s_nop 1")
        mf(3)
    def vtile(slot, i):
        for b in range(4):
            r = VR + slot*16 + b*4
            a0 = ACC + (b & 1)*8
            A(f"v_mfma_f32_4x4x4_16b_bf16 {vr(a0,4)}, {vr(AREG+2*i,2)}, {ar(r,2)}, {vr(a0,4)} cbsz:2 abid:{b}")
            A(f"v_mfma_f32_4x4x4_16b_bf16 {vr(a0+4,4)}, {vr(AREG+2*i,2)}, {ar(r+2,2)}, {vr(a0+4,4)} cbsz:2 abid:{b}")
    def rnd4(lvl=9):
        if NORND >= lvl:
            A("s_nop 1"); return
        A(f"v_cvt_pk_bf16_f32 {v(T+4)}, {v(T)}, {v(T+1)}\nv_cvt_pk_bf16_f32 {v(T+5)}, {v(T+2)}, {v(T+3)}")
        unp4()
    def unp4():
        A(f"v_lshlrev_b32 {v(T)}, 16, {v(T+4)}\nv_and_b32 {v(T+1)}, {sMASK}, {v(T+4)}\nv_lshlrev_b32 {v(T+2)}, 16, {v(T+5)}\nv_and_b32 {v(T+3)}, {sMASK}, {v(T+5)}")
    def phi(S, d0, d1):
        A(f"v_cvt_pk_bf16_f32 {v(T+6)}, {S}, {S}")
        A(f"v_cvt_pk_bf16_f32 {v(T+4)}, {v(P)}, {v(P+1)}\nv_cvt_pk_bf16_f32 {v(T+5)}, {v(P+2)}, {v(P+3)}")
        A(f"v_and_b32 {v(T+6)}, {sMASK}, {v(T+6)}")
        unp4()
        if NORND >= 3:
            for i in range(4): A(f"v_fma_f32 {v(T+i)}, {S}, -0.5, {v(P+i)}")
        else:
            for i in range(4): A(f"v_fma_f32 {v(T+i)}, {v(T+6)}, -0.5, {v(T+i)}")
        rnd4(2)
        A(f"v_pk_mul_f32 {vr(T,2)}, {vr(T,2)}, {sL2E}\nv_pk_mul_f32 {vr(T+2,2)}, {vr(T+2,2)}, {sL2E}")
        for i in range(4): A(f"v_exp_f32 {v(T+i)}, {v(T+i)}")
        rnd4(1)
        A(f"v_pk_mul_f32 {vr(T,2)}, {vr(T,2)}, {sISM}\nv_pk_mul_f32 {vr(T+2,2)}, {vr(T+2,2)}, {sISM}")
        rnd4(1)
        A(f"v_pk_add_f32 {vr(T,2)}, {vr(T,2)}, {sEPS}\nv_pk_add_f32 {vr(T+2,2)}, {vr(T+2,2)}, {sEPS}")
        A(f"v_cvt_pk_bf16_f32 {d0}, {v(T)}, {v(T+1)}\nv_cvt_pk_bf16_f32 {d1}, {v(T+2)}, {v(T+3)}")
    def elementwise():
        a, b = v(T+8), v(T+9)
        A(f"v_and_b32 {a}, {v(GA)}, {vM[0]}\nv_and_b32 {b}, {v(GB)}, {vM[0]}")
        for r in range(1, 4):
            A(f"v_and_or_b32 {a}, {v(GA+r)}, {vM[r]}, {a}\nv_and_or_b32 {b}, {v(GB+r)}, {vM[r]}, {b}")
        A(f"s_nop 1\nv_permlane32_swap_b32 {a}, {b}\nv_or_b32 {a}, {a}, {b}\nv_mov_b32 {b}, {a}\ns_nop 1\nv_permlane16_swap_b32 {a}, {b}\nv_or_b32 {a}, {a}, {b}")
        phi(a, v(T+10), v(T+11))
        w = v(T+12)
        A(f"v_dot2_f32_bf16 {w}, {v(T+10)}, {vPQ[0]}, 0\nv_dot2_f32_bf16 {w}, {v(T+11)}, {vPQ[1]}, {w}\ns_nop 2")
        A(f"ds_bpermute_b32 {v(T+13)}, {vIlo}, {w}\nds_bpermute_b32 {v(T+14)}, {vIhi}, {w}\ns_waitcnt lgkmcnt(0)")
        A(f"v_add_f32 {w}, {v(T+13)}, {v(T+14)}\nv_cvt_pk_bf16_f32 {w}, {w}, {w}\nv_and_b32 {v(T+13)}, {sMASK}, {w}\nv_add_f32 {vDEN}, {vDEN}, {v(T+13)}")
        for i in range(2):
            A(f"v_and_b32_dpp {v(AREG+2*i)}, {w}, {vMA0} quad_perm:[{i},{i},{i},{i}] row_mask:0xf bank_mask:0xf")
            A(f"v_and_b32_dpp {v(AREG+2*i+1)}, {w}, {vMA1} quad_perm:[{i},{i},{i},{i}] row_mask:0xf bank_mask:0xf")

    A("s_waitcnt vmcnt(28)")
    ktile(ACC, OMA, GA, True, both=True)
    A("s_nop 7")
    phi(v(GA), vPQ[0], vPQ[1])
    for i in range(16): A(f"v_mov_b32 {v(ACC+i)}, 0")
    A("s_nop 1")

    A(".p2align 6\nL_loop:")
    for p in range(2):
        A("s_waitcnt vmcnt(28)")
        ktile(KR + (2*p)*16, OMA, GA, True)
        loadK(2*p)
        A("s_waitcnt vmcnt(28)")
        vtile(2*(1-p), 0)
        loadV(2*(1-p))
        A("s_waitcnt vmcnt(28)")
        ktile(KR + (2*p+1)*16, OMB, GB, False)
        loadK(2*p+1)
        A("s_waitcnt vmcnt(28)")
        vtile(2*(1-p)+1, 1)
        loadV(2*(1-p)+1)
        elementwise()
    A(f"s_sub_u32 {sCNT}, {sCNT}, 1\ns_cmp_lg_u32 {sCNT}, 0\ns_cbranch_scc1 L_loop")
    A("s_waitcnt vmcnt(24)")
    vtile(2, 0)
    A("s_waitcnt vmcnt(16)")
    vtile(3, 1)
    if STAMP: A("s_memrealtime s[62:63]")
    for sh in (8, 4, 2, 1):
        A(f"v_add_f32_dpp {vDEN}, {vDEN}, {vDEN} row_ror:{sh} row_mask:0xf bank_mask:0xf\ns_nop 1")
    for r in range(8): A(f"v_add_f32 {v(ACC+r)}, {v(ACC+r)}, {v(ACC+8+r)}")
    A(f"s_lshl_b32 s18, {sWAVE}, 9\ns_lshl_b32 s19, {sWAVE}, 4\ns_add_u32 s19, s19, 2048")
    A(f"v_lshlrev_b32 v48, 5, v19\nv_lshl_add_u32 v48, v18, 3, v48\nv_add_u32 v48, s18, v48\nv_lshl_add_u32 v49, v18, 2, s19")
    for r in range(4): A(f"v_permlane32_swap_b32 {v(ACC+r)}, {v(ACC+4+r)}")
    for r in range(4): A(f"v_add_f32 {v(ACC+r)}, {v(ACC+r)}, {v(ACC+4+r)}")
    A("s_nop 1")
    for r in range(2): A(f"v_permlane16_swap_b32 {v(ACC+r)}, {v(ACC+2+r)}")
    for r in range(2): A(f"v_add_f32 {v(ACC+r)}, {v(ACC+r)}, {v(ACC+2+r)}")
    A(f"ds_write_b64 v48, {vr(ACC,2)}\nds_write_b32 v49, {vDEN}\ns_waitcnt lgkmcnt(0)\ns_barrier")
    A(f"s_cmp_lg_u32 {sWAVE}, 0\ns_cbranch_scc1 L_fin")
    A("v_lshlrev_b32 v48, 3, v0\nv_mov_b32 v49, 2048")
    for w in range(4): A(f"ds_read_b64 {vr(64+2*w,2)}, v48 offset:{w*512}")
    for w in range(4): A(f"ds_read_b128 {vr(72+4*w,4)}, v49 offset:{w*16}")
    A("s_lshl_b32 s18, s2, 10\ns_add_u32 s16, s16, s18\ns_addc_u32 s17, s17, 0")
    A("s_waitcnt lgkmcnt(4)")
    A("v_pk_add_f32 v[64:65], v[64:65], v[66:67]\nv_pk_add_f32 v[68:69], v[68:69], v[70:71]\nv_pk_add_f32 v[64:65], v[64:65], v[68:69]")
    A("s_waitcnt lgkmcnt(0)")
    A("v_pk_add_f32 v[72:73], v[72:73], v[74:75]\nv_pk_add_f32 v[76:77], v[76:77], v[78:79]\nv_pk_add_f32 v[80:81], v[80:81], v[82:83]\nv_pk_add_f32 v[84:85], v[84:85], v[86:87]")
    A("v_pk_add_f32 v[72:73], v[72:73], v[76:77]\nv_pk_add_f32 v[80:81], v[80:81], v[84:85]\nv_pk_add_f32 v[72:73], v[72:73], v[80:81]")
    A("v_add_f32 v66, v72, v73\nv_mul_f32 v66, 0.5, v66\nv_mov_b32 v67, 0")
    A(f"global_store_dwordx4 {vVoff}, v[64:67], s[16:17] sc1")
    A(f"s_lshl_b32 s19, {sHEAD}, 2\nv_mov_b32 v48, s19\nv_mov_b32 v49, 1")
    A("s_waitcnt vmcnt(0)")
    A("s_mov_b64 exec, 1\nglobal_atomic_add v50, v48, v49, s[14:15] sc0\ns_waitcnt vmcnt(0)\ns_mov_b64 exec, -1")
    A("v_readfirstlane_b32 s19, v50\ns_nop 3\ns_cmp_lg_u32 s19, 3\ns_cbranch_scc1 L_fin")
    A("s_and_b32 s18, s2, 3\ns_lshl_b32 s18, s18, 10\ns_sub_u32 s16, s16, s18\ns_subb_u32 s17, s17, 0")
    for w in range(4): A(f"global_load_dwordx4 {vr(64+4*w,4)}, {vVoff}, s[16:17] offset:{w*1024} sc1")
    A(f"s_lshl_b32 s18, {sHEAD}, 8\ns_add_u32 s12, s12, s18\ns_addc_u32 s13, s13, 0\nv_lshlrev_b32 v48, 2, v0")
    A("s_waitcnt vmcnt(0)")
    A("v_pk_add_f32 v[64:65], v[64:65], v[68:69]\nv_pk_add_f32 v[72:73], v[72:73], v[76:77]\nv_add_f32 v66, v66, v70\nv_add_f32 v74, v74, v78")
    A("v_pk_add_f32 v[64:65], v[64:65], v[72:73]\nv_add_f32 v66, v66, v74\nv_add_f32 v66, s44, v66\nv_rcp_f32 v66, v66\ns_nop 0")
    A("v_mul_f32 v64, v64, v66\nv_mul_f32 v65, v65, v66\nv_cvt_pk_bf16_f32 v64, v64, v65")
    A("global_store_dword v48, v64, s[12:13]")
    A("L_fin:")
    if PADTO:
        A(f"s_add_u32 s60, s60, {PADTO*100}\nL_spin:\ns_memrealtime s[64:65]\ns_waitcnt lgkmcnt(0)\ns_sub_u32 s66, s64, s60\ns_cmp_lt_i32 s66, 0\ns_cbranch_scc1 L_spin")
    if STAMP:
        A("s_waitcnt vmcnt(0)\ns_memrealtime s[64:65]\ns_load_dwordx2 s[16:17], s[0:1], 48")
        A(f"s_lshl_b32 s19, s2, 2\ns_add_u32 s19, s19, {sWAVE}\ns_lshl_b32 s19, s19, 4")
        A("s_waitcnt lgkmcnt(0)\ns_add_u32 s16, s16, 0x10000000\ns_addc_u32 s17, s17, 0")
        e = "s62", "s63"
        if STAMP == 2: e = "s64", "s65"
        A(f"v_mov_b32 v4, s60\nv_mov_b32 v5, s61\nv_mov_b32 v6, {e[0]}\nv_mov_b32 v7, {e[1]}\nv_mov_b32 v1, s19")
        A("s_mov_b64 exec, 1\nglobal_store_dwordx4 v1, v[4:7], s[16:17]")
    A("L_end:\ns_endpgm")
    A(""".section .rodata,"a"
.p2align 6
.amdhsa_kernel standalone__linear_kernel_rfa__decode_kernel
  .amdhsa_next_free_vgpr 224
  .amdhsa_next_free_sgpr 72
  .amdhsa_accum_offset 128
  .amdhsa_group_segment_fixed_size 0
  .amdhsa_kernarg_size 56
  .amdhsa_user_sgpr_count 2
  .amdhsa_user_sgpr_kernarg_segment_ptr 1
  .amdhsa_system_sgpr_workgroup_id_x 1
.end_amdhsa_kernel""")
    return "\n".join(L) + "\n"

if __name__ == "__main__":
    out = sys.argv[1]
    kw = {}
    for x in sys.argv[2:]:
        k, val = x.split("=")
        kw[k] = int(val) if val.lstrip("-").isdigit() else val.replace("+", " ")
    open(out, "w").write(gen(**kw))
```

```python
import sys, struct
def f2u(x): return struct.unpack("<I", struct.pack("<f", x))[0]
HEADER = """; Kernarg layout for this problem (56 bytes, ptrs only, base s[0:1]):
"""
def gen(FLAGS="nt", MST=0, MAPX=1, WIN="21", PRIO=3, W0=0, S=32, LAT=0, FAKE=-1, CTL=1):
    L = []; A = L.append
    NWG = 256
    LIMIT = 0x200000
    SINC = 0x10000
    wins = [int(c) for c in str(WIN).split(",")]
    W0 = W0 or wins[0]
    VBASE = 49152
    FADDR = 98304
    DYN = S < 32
    assert 8 <= S <= 32
    A(HEADER + f"; @launch grid=({NWG},1,1) block=(320,1,1) lds=98368")
    A('.amdgcn_target "amdgcn-amd-amdhsa--gfx950"\n.text\n.globl standalone__linear_kernel_rfa__decode_kernel\n.p2align 8\n.type standalone__linear_kernel_rfa__decode_kernel,@function\nstandalone__linear_kernel_rfa__decode_kernel:')
    sWAVE, sHEAD, sPART = "s3", "s18", "s19"
    KSRD, VSRD, OSRD, QSRD = "s[20:23]", "s[24:27]", "s[28:31]", "s[48:51]"
    sSC = "s[34:35]"; sMASK = "s36"; sL2E = "s[38:39]"; sISM = "s[42:43]"; sEPS = "s[44:45]"; sFLG = "s[54:55]"
    vDMA = ["v1", "v2", "v3", "v4"]; vRD0 = "v5"; vKA = ["v6", "v7", "v8", "v19"]; vVoff = "v9"; vMA = ["v10", "v11"]
    vM = ["v12", "v13", "v14", "v15"]; vDEN = "v16"; vPQ = ["v17", "v18"]
    AREG, PA, PB, GA, GB, ACC, T, KX, VX = 20, 24, 28, 32, 36, 40, 56, 72, 88
    OM = 104
    vN, vG, vVA, vV0 = "v120", "v121", "v122", "v123"
    vF, vFA = "v124", "v125"
    NV = 128
    def v(i): return f"v{i}"
    def vr(i, n): return f"v[{i}:{i+n-1}]"
    def stamp(k):
        if MST: A(f"s_memrealtime s[{60+2*k}:{61+2*k}]")

    A(f"s_cmp_ge_u32 s2, {NWG}\ns_cbranch_scc1 L_end")
    stamp(0)
    A("s_load_dwordx8 s[4:11], s[0:1], 0")
    A(f"v_lshrrev_b32 {vG}, 6, v0\nv_and_b32 v0, 63, v0")
    A(f"v_and_b32 {vN}, 15, v0\nv_readfirstlane_b32 {sWAVE}, {vG}\nv_lshrrev_b32 {vG}, 4, v0")
    if MAPX:
        A(f"s_lshr_b32 s37, s2, 1\ns_and_b32 {sPART}, s37, 3\ns_xor_b32 s37, s37, s2\ns_and_b32 s37, s37, 1\ns_lshr_b32 {sHEAD}, s2, 3\ns_lshl1_add_u32 {sHEAD}, {sHEAD}, s37")
    else:
        A(f"s_lshr_b32 {sHEAD}, s2, 2\ns_and_b32 {sPART}, s2, 3")
    A(f"v_xor_b32 {vDMA[0]}, {vG}, {vN}\nv_lshlrev_b32 {vDMA[0]}, 4, {vDMA[0]}")
    A(f"s_cmp_lg_u32 {sWAVE}, 0\ns_cbranch_scc1 L_consumer")
    sK = ["s32", "s33", "s40", "s41"]; sV = ["s46", "s47", "s52", "s53"]; sKL, sVL, sP = "s56", "s57", "s58"
    A(f"v_lshl_add_u32 {vDMA[0]}, {vG}, 8, {vDMA[0]}")
    A(f"s_lshl_b32 {sK[0]}, {sPART}, 14\ns_mov_b32 s22, {LIMIT}\ns_mov_b32 s23, 0x20000\ns_lshl_b32 s37, {sHEAD}, 21\ns_mov_b32 m0, 0")
    A(f"v_xor_b32 {vDMA[1]}, 64, {vDMA[0]}\nv_xor_b32 {vDMA[2]}, 0x80, {vDMA[0]}\nv_xor_b32 {vDMA[3]}, 64, {vDMA[2]}")
    for t in range(1, 4): A(f"s_add_u32 {sK[t]}, {sK[0]}, {t*4096}")
    A("s_waitcnt lgkmcnt(0)")
    A("s_add_u32 s20, s6, s37\ns_addc_u32 s21, s7, 0")
    cnt = [0]
    def group(kind, ldsbase, paced_from=0, imm=None):
        for pc in range(4):
            for t in range(4):
                n = pc*4 + t
                if imm is not None: A(f"s_mov_b32 m0, {imm + t*4096}")
                else: A(f"s_add_u32 m0, {ldsbase}, {t*4096}" if t else f"s_mov_b32 m0, {ldsbase}")
                if n >= paced_from:
                    A(f"s_waitcnt vmcnt({wins[cnt[0] % len(wins)] - 1})"); cnt[0] += 1
                else: A("s_nop 0")
                if kind == "K": A(f"buffer_load_dwordx4 {vDMA[pc]}, {KSRD}, {sK[t]} offen offset:{pc*1024} {FLAGS} lds")
                else: A(f"buffer_load_dwordx4 {vVoff}, {VSRD}, {sV[t]} offen offset:{pc*1024} {FLAGS} lds")
    group("K", None, min(16, W0), imm=0)
    if PRIO: A(f"s_setprio {PRIO}")
    for t in range(4): A(f"s_mov_b32 {sV[t]}, {sK[t]}\ns_add_u32 {sK[t]}, {sK[t]}, {SINC}")
    A(f"s_add_u32 s24, s8, s37\ns_addc_u32 s25, s9, 0\ns_mov_b32 s26, {LIMIT}\ns_mov_b32 s27, 0x20000\nv_lshlrev_b32 {vVoff}, 4, v0")
    group("K", None, max(0, W0-16), imm=16384)
    if not DYN:
        A(f"s_mov_b32 {sKL}, 32768\ns_mov_b32 {sVL}, {VBASE}\ns_mov_b32 {sP}, 0")
        A("s_waitcnt vmcnt(16)\ns_barrier")
        stamp(1)
        A("L_lloop:")
        for t in range(4): A(f"s_add_u32 {sK[t]}, {sK[t]}, {SINC}")
        A(f"s_cmp_ge_u32 {sP}, 30\ns_cbranch_scc1 L_lnok")
        group("K", sKL)
        A("L_lnok:")
        group("V", sVL)
        for t in range(4): A(f"s_add_u32 {sV[t]}, {sV[t]}, {SINC}")
        A(f"s_add_u32 {sKL}, {sKL}, 16384\ns_cmp_eq_u32 {sKL}, 49152\ns_cselect_b32 {sKL}, 0, {sKL}")
        A(f"s_add_u32 {sVL}, {sVL}, 16384\ns_cmp_eq_u32 {sVL}, {VBASE+49152}\ns_cselect_b32 {sVL}, {VBASE}, {sVL}")
        A(f"s_add_u32 {sP}, {sP}, 1\ns_cmp_le_u32 {sP}, 30\ns_cbranch_scc1 L_lbar\ns_waitcnt vmcnt(16)\nL_lbar:\ns_barrier")
        if MST:
            for pp, r in ((4, 66), (12, 64), (20, 70), (26, 72)):
                A(f"s_cmp_lg_u32 {sP}, {pp}\ns_cbranch_scc1 L_nost{pp}\ns_memrealtime s[{r}:{r+1}]\nL_nost{pp}:")
        A(f"s_cmp_lt_u32 {sP}, 32\ns_cbranch_scc1 L_lloop")
    else:
        sTK, sEL, sST = "s34", "s35", "s36"
        sCNT, sDBG = "s[16:17]", "s[14:15]"
        A("s_load_dwordx4 s[12:15], s[0:1], 32\ns_load_dwordx2 s[16:17], s[0:1], 48")
        A(f"s_mov_b32 {sKL}, 32768\ns_mov_b32 {sVL}, {VBASE}\ns_mov_b32 {sP}, 0\ns_mov_b32 {sST}, {sK[0]}\ns_mov_b32 {sTK}, 0")
        A(f"v_mov_b32 v10, {FADDR}\nv_mov_b32 v11, 0x7fff\nds_write_b32 v10, v11")
        A(f"s_lshl_b32 s37, {sHEAD}, 13\ns_lshl_b32 s38, {sHEAD}, 2\ns_waitcnt lgkmcnt(0)")
        A("s_add_u32 s16, s16, s37\ns_addc_u32 s17, s17, 0\ns_add_u32 s14, s14, s38\ns_addc_u32 s15, s15, 0")
        A(f"s_mov_b32 {sEL}, 0x100")
        A("s_waitcnt vmcnt(16)\ns_barrier")
        stamp(1)
        if LAT: A("s_mov_b32 s80, 0\ns_mov_b32 s81, 0\ns_mov_b32 s82, 0")
        A("L_lloop:")
        if LAT: A("s_memtime s[84:85]")
        A("s_waitcnt lgkmcnt(0)")
        if LAT:
            A(f"s_memtime s[86:87]\ns_waitcnt lgkmcnt(0)\ns_sub_u32 s86, s86, s84\ns_max_u32 s80, s80, s86\ns_cmp_lt_u32 {sP}, 17\ns_cselect_b32 s87, s86, 0\ns_add_u32 s81, s81, s87\ns_sub_u32 s86, s86, s87\ns_add_u32 s82, s82, s86")
        assert S >= 20
        A(f"s_cmp_lt_u32 {sP}, 16\ns_cbranch_scc1 L_lctl")
        A(f"s_cmp_lt_u32 {sP}, {S-3}\ns_cbranch_scc1 L_lstatic")
        A(f"s_cmp_eq_u32 {sP}, {S-3}\ns_cbranch_scc1 L_lctl_check")
        if FAKE < 0: A(f"s_lshl_b32 s37, {sTK}, 14\ns_add_u32 s37, s37, {4*S*16384}\ns_mov_b32 {sTK}, 1\ns_atomic_add {sTK}, {sCNT}, 0x0 glc\ns_branch L_lhave")
        elif FAKE & 16: A(f"s_mov_b32 {sTK}, 1\ns_atomic_add {sTK}, {sCNT}, 0x0 glc")
        A(f"L_lstatic:\ns_add_u32 {sST}, {sST}, {SINC}\ns_mov_b32 s37, {sST}")
        A("L_lhave:")
        A(f"s_mov_b32 s38, {sK[0]}")
        for t in range(4): A(f"s_add_u32 {sK[t]}, s37, {t*4096}")
        A(f"s_cmp_ge_u32 s37, {LIMIT}\ns_cbranch_scc1 L_lnok")
        group("K", sKL)
        A("L_lkdone:")
        group("V", sVL)
        for t in range(4): A(f"s_add_u32 {sV[t]}, s38, {t*4096}")
        A(f"s_add_u32 {sKL}, {sKL}, 16384\ns_cmp_eq_u32 {sKL}, 49152\ns_cselect_b32 {sKL}, 0, {sKL}")
        A(f"s_add_u32 {sVL}, {sVL}, 16384\ns_cmp_eq_u32 {sVL}, {VBASE+49152}\ns_cselect_b32 {sVL}, {VBASE}, {sVL}")
        A(f"s_add_u32 {sP}, {sP}, 1\ns_cmp_lt_u32 {sK[0]}, {LIMIT}\ns_cbranch_scc1 L_lbar\ns_waitcnt vmcnt(16) lgkmcnt(0)\nL_lbar:\ns_barrier")
        if MST:
            for pp, r in ((4, 66), (12, 64), (20, 70), (26, 72)):
                A(f"s_cmp_lg_u32 {sP}, {pp}\ns_cbranch_scc1 L_nost{pp}\ns_memrealtime s[{r}:{r+1}]\nL_nost{pp}:")
        A(f"s_cmp_lt_u32 {sV[0]}, {LIMIT}\ns_cbranch_scc1 L_lloop")
        A("s_branch L_ldone")
        A(f"L_lnok:\ns_add_u32 s37, {sP}, 2\nv_mov_b32 v11, s37\nds_min_u32 v10, v11\ns_branch L_lkdone")
        A(f"L_lctl:\ns_sub_u32 s37, {sP}, {sPART}\ns_cmp_eq_u32 s37, 0\ns_cbranch_scc1 L_lctl_elect")
        A(f"s_sub_u32 s38, s37, {sPART}\ns_cmp_eq_u32 s38, 8\ns_cbranch_scc1 L_lctl_poll")
        A(f"s_sub_u32 s37, s37, 1\ns_cmp_gt_u32 s37, 1\ns_cbranch_scc1 L_lstatic")
        A(f"s_and_b32 s38, {sEL}, 0xff00\ns_cmp_lg_u32 s38, 0\ns_cbranch_scc1 L_lstatic")
        A(f"s_cmp_eq_u32 s37, 0\ns_cbranch_scc0 L_lctl_flag")
        A((f"s_atomic_swap {sTK}, {sCNT}, 0x0 glc\n" if FAKE & 2 else "") + "s_branch L_lstatic")
        A("L_lctl_elect:\n" + (f"s_atomic_add {sEL}, {sDBG}, 0x0 glc\n" if (FAKE & 1 and CTL == 1) else f"s_lshl_b32 {sEL}, {sPART}, 8\n") + "s_branch L_lstatic")
        A(f"L_lctl_flag:\ns_mov_b32 {sTK}, 0x10000\n" + (f"s_atomic_add {sTK}, {sDBG}, 0x0 glc\n" if FAKE & 4 else "") + "s_branch L_lstatic")
        if CTL == 1:
            A(f"L_lctl_poll:\ns_mov_b32 {sTK}, 0\n" + (f"s_atomic_add {sTK}, {sDBG}, 0x0 glc\n" if FAKE & 8 else "") + "s_branch L_lstatic")
        else:
            A(f"L_lctl_poll:\nv_mov_b32 v12, 0\ns_mov_b64 exec, 1\n" + (f"global_load_dword v12, v12, {sDBG} sc1\n" if FAKE & 8 else "") + "s_mov_b64 exec, -1\ns_branch L_lstatic")
        A(f"L_lctl_check:")
        if FAKE >= 0: A("s_branch L_lstatic")
        if CTL == 2: A(f"v_readfirstlane_b32 {sTK}, v12\ns_nop 3\nL_lctl_check2:")
        A(f"s_bitcmp1_b32 {sTK}, 16\ns_cbranch_scc1 L_lctl_ok")
        A(f"s_sleep 4\ns_mov_b32 {sTK}, 0\ns_atomic_add {sTK}, {sDBG}, 0x0 glc\ns_waitcnt lgkmcnt(0)\ns_branch L_lctl_check{'2' if CTL == 2 else ''}")
        A(f"L_lctl_ok:\ns_mov_b32 {sTK}, 1\ns_atomic_add {sTK}, {sCNT}, 0x0 glc\ns_branch L_lstatic")
        A("L_ldone:")
    A("s_waitcnt vmcnt(0)")
    stamp(4)
    A("s_barrier")
    if MST:
        A(f"s_add_u32 s62, s60, {sP}\ns_addc_u32 s63, s61, 0")
        if LAT:
            for dst, src in ((64, 80), (70, 81), (72, 82)):
                A(f"s_mul_i32 s37, s{src}, 2731\ns_lshr_b32 s37, s37, 16\ns_add_u32 s{dst}, s60, s37\ns_addc_u32 s{dst+1}, s61, 0")
        A("s_branch L_fin")
    else:
        A("s_endpgm")

    A("L_consumer:")
    sCW, sKS, sVS, sIT = "s59", "s32", "s33", "s41"
    A("s_load_dwordx4 s[12:15], s[0:1], 32\ns_load_dwordx2 s[16:17], s[0:1], 48")
    A(f"s_sub_u32 {sCW}, {sWAVE}, 1\ns_lshl_b32 s37, {sCW}, 12")
    A(f"v_lshl_add_u32 {vRD0}, {vN}, 8, {vDMA[0]}\nv_add_u32 {vRD0}, s37, {vRD0}")
    A(f"v_lshlrev_b32 {vVoff}, 4, v0\nv_add_u32 {vV0}, s37, {vVoff}")
    A(f"v_and_b32 {v(T)}, 7, v0\nv_lshlrev_b32 {v(T)}, 8, {v(T)}\nv_lshlrev_b32 {v(T+1)}, 4, {vG}\nv_add_u32 {v(T)}, {v(T)}, {v(T+1)}")
    A(f"s_mov_b32 s30, 2048\ns_mov_b32 s31, 0x20000\ns_mov_b32 s50, 16384\ns_mov_b32 s51, 0x20000\ns_lshl_b32 s46, {sHEAD}, 8")
    A("s_waitcnt lgkmcnt(0)")
    A("s_mov_b32 s28, s10\ns_mov_b32 s29, s11\ns_mov_b32 s48, s4\ns_mov_b32 s49, s5")
    for c in range(4): A(f"buffer_load_dwordx4 {vr(OM+c*4,4)}, {v(T)}, {OSRD}, 0 offen offset:{c*64}")
    for c in range(4): A(f"buffer_load_dwordx4 {vr(KX+c*4,4)}, {v(T+1)}, {QSRD}, s46 offen offset:{c*64}")
    if MST: A("s_mov_b64 s[70:71], 0\ns_mov_b64 s[72:73], 0\ns_mov_b64 s[62:63], 0")
    sc = f2u(128.0 ** -0.25); l2e = f2u(1.4426950408889634); ism = f2u(8.0 ** -0.5); eps = f2u(1e-6)
    A(f"s_mov_b32 s34, {sc:#x}\ns_mov_b32 s35, {sc:#x}\ns_mov_b32 {sMASK}, 0xffff0000\ns_mov_b32 s38, {l2e:#x}\ns_mov_b32 s39, {l2e:#x}")
    A(f"s_mov_b32 s42, {ism:#x}\ns_mov_b32 s43, {ism:#x}\ns_mov_b32 s44, {eps:#x}\ns_mov_b32 s45, {eps:#x}")
    A(f"s_mov_b32 {sKS}, 0\ns_mov_b32 {sVS}, {VBASE+16384}\ns_mov_b32 {sIT}, 0")
    A(f"s_lshl_b32 s37, {sHEAD}, 13\ns_lshl_b32 s46, {sHEAD}, 2")
    A("s_add_u32 s16, s16, s37\ns_addc_u32 s17, s17, 0\ns_add_u32 s54, s14, s46\ns_addc_u32 s55, s15, 0")
    A(f"v_and_b32 {v(T+2)}, 1, v0\nv_lshlrev_b32 {v(T+2)}, 4, {v(T+2)}\nv_mov_b32 {v(T+3)}, 0xffff\nv_lshlrev_b32 {v(T+2)}, {v(T+2)}, {v(T+3)}\nv_and_b32 {v(T+3)}, 2, v0\nv_cmp_ne_u32 vcc, 0, {v(T+3)}\ns_nop 1")
    A(f"v_cndmask_b32_e64 {vMA[0]}, {v(T+2)}, 0, vcc\nv_cndmask_b32_e64 {vMA[1]}, 0, {v(T+2)}, vcc")
    A(f"v_lshlrev_b32 {v(T+2)}, 2, {vG}\nv_sub_u32 {v(T+2)}, {vN}, {v(T+2)}")
    for r in range(4):
        A(f"v_cmp_eq_u32 vcc, {r}, {v(T+2)}\ns_nop 1\nv_cndmask_b32_e64 {vM[r]}, 0, -1, vcc")
    A(f"v_mov_b32 {vDEN}, 0")
    for i in range(16): A(f"v_mov_b32 {v(ACC+i)}, 0")

    def scale_a(x):
        for i in range(4):
            A(f"v_lshlrev_b32 {v(T+2*i)}, 16, {v(x+i)}\nv_and_b32 {v(T+2*i+1)}, {sMASK}, {v(x+i)}")
    def scale_b(x):
        for i in range(4): A(f"v_pk_mul_f32 {vr(T+2*i,2)}, {vr(T+2*i,2)}, {sSC}")
        for i in range(4): A(f"v_cvt_pk_bf16_f32 {v(x+i)}, {v(T+2*i)}, {v(T+2*i+1)}")
    def mf(x, P, G, c):
        A(f"v_mfma_f32_16x16x32_bf16 {vr(P,4)}, {vr(OM+c*4,4)}, {vr(x+c*4,4)}, {'0' if c == 0 else vr(P,4)}")
        A(f"v_mfma_f32_16x16x32_bf16 {vr(G,4)}, {vr(x+c*4,4)}, {vr(x+c*4,4)}, {'0' if c == 0 else vr(G,4)}")
    def ktile(x, P, G, waits=False):
        for c in range(4):
            if waits: A(f"s_waitcnt lgkmcnt({7-c})")
            scale_a(x + c*4)
            if c > 0: mf(x, P, G, c-1)
            scale_b(x + c*4)
        A("s_nop 1"); mf(x, P, G, 3)
    def vtile(sl):
        for b in range(4):
            r = VX + b*4
            a0 = ACC + (b & 1)*8
            A(f"v_mfma_f32_4x4x4_16b_bf16 {vr(a0,4)}, {vr(AREG+2*sl,2)}, {vr(r,2)}, {vr(a0,4)} cbsz:2 abid:{b}")
            A(f"v_mfma_f32_4x4x4_16b_bf16 {vr(a0+4,4)}, {vr(AREG+2*sl,2)}, {vr(r+2,2)}, {vr(a0+4,4)} cbsz:2 abid:{b}")
    def unp4():
        A(f"v_lshlrev_b32 {v(T)}, 16, {v(T+4)}\nv_and_b32 {v(T+1)}, {sMASK}, {v(T+4)}\nv_lshlrev_b32 {v(T+2)}, 16, {v(T+5)}\nv_and_b32 {v(T+3)}, {sMASK}, {v(T+5)}")
    def rnd4():
        A(f"v_cvt_pk_bf16_f32 {v(T+4)}, {v(T)}, {v(T+1)}\nv_cvt_pk_bf16_f32 {v(T+5)}, {v(T+2)}, {v(T+3)}")
        unp4()
    def phi(P, Sq, d0, d1):
        A(f"v_cvt_pk_bf16_f32 {v(T+6)}, {Sq}, {Sq}")
        A(f"v_cvt_pk_bf16_f32 {v(T+4)}, {v(P)}, {v(P+1)}\nv_cvt_pk_bf16_f32 {v(T+5)}, {v(P+2)}, {v(P+3)}")
        A(f"v_and_b32 {v(T+6)}, {sMASK}, {v(T+6)}")
        unp4()
        for i in range(4): A(f"v_fma_f32 {v(T+i)}, {v(T+6)}, -0.5, {v(T+i)}")
        rnd4()
        A(f"v_pk_mul_f32 {vr(T,2)}, {vr(T,2)}, {sL2E}\nv_pk_mul_f32 {vr(T+2,2)}, {vr(T+2,2)}, {sL2E}")
        for i in range(4): A(f"v_exp_f32 {v(T+i)}, {v(T+i)}")
        rnd4()
        A(f"v_pk_mul_f32 {vr(T,2)}, {vr(T,2)}, {sISM}\nv_pk_mul_f32 {vr(T+2,2)}, {vr(T+2,2)}, {sISM}")
        rnd4()
        A(f"v_pk_add_f32 {vr(T,2)}, {vr(T,2)}, {sEPS}\nv_pk_add_f32 {vr(T+2,2)}, {vr(T+2,2)}, {sEPS}")
        A(f"v_cvt_pk_bf16_f32 {d0}, {v(T)}, {v(T+1)}\nv_cvt_pk_bf16_f32 {d1}, {v(T+2)}, {v(T+3)}")
    def elementwise():
        a, b = v(T+8), v(T+9)
        A(f"v_and_b32 {a}, {v(GA)}, {vM[0]}\nv_and_b32 {b}, {v(GB)}, {vM[0]}")
        for r in range(1, 4):
            A(f"v_and_or_b32 {a}, {v(GA+r)}, {vM[r]}, {a}\nv_and_or_b32 {b}, {v(GB+r)}, {vM[r]}, {b}")
        for r in range(2): A(f"v_permlane32_swap_b32 {v(PA+r)}, {v(PB+r)}")
        A(f"v_permlane32_swap_b32 {a}, {b}\nv_or_b32 {a}, {a}, {b}\nv_mov_b32 {b}, {a}")
        for r in range(2, 4): A(f"v_permlane32_swap_b32 {v(PA+r)}, {v(PB+r)}")
        A(f"v_permlane16_swap_b32 {a}, {b}\nv_or_b32 {a}, {a}, {b}")
        phi(PA, a, v(T+10), v(T+11))
        w, t, ua, ub = v(T+12), v(T+13), v(T+14), v(T+15)
        A(f"v_dot2_f32_bf16 {w}, {v(T+10)}, {vPQ[0]}, 0\nv_dot2_f32_bf16 {w}, {v(T+11)}, {vPQ[1]}, {w}")
        A(f"s_nop 2\nv_mov_b32 {t}, {w}\ns_nop 1\nv_permlane16_swap_b32 {w}, {t}\nv_add_f32 {w}, {w}, {t}")
        if DYN: A(f"v_cndmask_b32_e64 {w}, 0, {w}, s[56:57]")
        A(f"v_cvt_pk_bf16_f32 {w}, {w}, {w}\nv_mov_b32 {t}, {w}\nv_and_b32 {ua}, {sMASK}, {w}\nv_add_f32 {vDEN}, {vDEN}, {ua}")
        A(f"v_permlane32_swap_b32 {w}, {t}\ns_nop 1")
        for g in range(4):
            A(f"v_mov_b32_dpp {ua}, {w} quad_perm:[{g},{g},{g},{g}] row_mask:{1<<g:#x} bank_mask:0xf")
            A(f"v_mov_b32_dpp {ub}, {t} quad_perm:[{g},{g},{g},{g}] row_mask:{1<<g:#x} bank_mask:0xf")
        A(f"v_and_b32 {v(AREG)}, {ua}, {vMA[0]}\nv_and_b32 {v(AREG+1)}, {ua}, {vMA[1]}\nv_and_b32 {v(AREG+2)}, {ub}, {vMA[0]}\nv_and_b32 {v(AREG+3)}, {ub}, {vMA[1]}")
    def addrs(k=True):
        if k:
            A(f"v_add_u32 {vKA[0]}, {sKS}, {vRD0}\nv_xor_b32 {vKA[1]}, 64, {vKA[0]}\nv_xor_b32 {vKA[2]}, 0x80, {vKA[0]}\nv_xor_b32 {vKA[3]}, 64, {vKA[2]}")
            A(f"s_add_u32 {sKS}, {sKS}, 16384\ns_cmp_eq_u32 {sKS}, 49152\ns_cselect_b32 {sKS}, 0, {sKS}")
        A(f"v_add_u32 {vVA}, {sVS}, {vV0}")
        A(f"s_add_u32 {sVS}, {sVS}, 16384\ns_cmp_eq_u32 {sVS}, {VBASE+49152}\ns_cselect_b32 {sVS}, {VBASE}, {sVS}")
    def vreads():
        for b in range(4): A(f"ds_read_b128 {vr(VX+b*4,4)}, {vVA} offset:{b*1024}")

    A("s_waitcnt vmcnt(0)")
    ktile(KX, PA, GA)
    A("s_nop 7")
    phi(PA, v(GA), vPQ[0], vPQ[1])
    stamp(2)
    sNS, sWM = "s58", "s[56:57]"
    if DYN: A(f"v_mov_b32 {vFA}, {FADDR}\ns_mov_b32 s56, -1")
    A(".p2align 6\nL_loop:")
    for sl in range(2):
        addrs()
        A("s_barrier")
        if DYN and sl == 1: A(f"ds_read_b32 {vF}, {vFA}")
        for c in range(4): A(f"ds_read_b128 {vr(KX+c*4,4)}, {vKA[c]}")
        vreads()
        ktile(KX, PA if sl == 0 else PB, GA if sl == 0 else GB, waits=True)
        A(f"s_cmp_eq_u32 {sIT}, 0\ns_waitcnt lgkmcnt(0)\ns_cbranch_scc1 L_novt{sl}")
        vtile(sl)
        A(f"L_novt{sl}:")
    if DYN:
        A(f"v_readfirstlane_b32 {sNS}, {vF}\ns_lshl1_add_u32 s37, {sIT}, 1\ns_nop 3\ns_cmp_lt_u32 s37, {sNS}\ns_cselect_b32 s57, -1, 0")
    A("s_nop 7")
    elementwise()
    if MST: A(f"s_cmp_lg_u32 {sIT}, 1\ns_cbranch_scc1 L_nost\ns_memrealtime s[66:67]\nL_nost:")
    if DYN:
        A(f"s_add_u32 {sIT}, {sIT}, 1\ns_lshl_b32 s37, {sIT}, 1\ns_cmp_lt_u32 s37, {sNS}\ns_cbranch_scc1 L_loop")
    else:
        A(f"s_add_u32 {sIT}, {sIT}, 1\ns_cmp_lt_u32 {sIT}, 16\ns_cbranch_scc1 L_loop")
    for sl in range(2):
        if DYN and sl == 1: A(f"s_bitcmp1_b32 {sNS}, 0\ns_cbranch_scc1 L_vdone")
        addrs(False)
        A("s_barrier")
        vreads()
        A("s_waitcnt lgkmcnt(0)")
        vtile(sl)
    A("L_vdone:")
    stamp(4)
    for sh in (8, 4, 2, 1):
        A(f"v_add_f32_dpp {vDEN}, {vDEN}, {vDEN} row_ror:{sh} row_mask:0xf bank_mask:0xf\ns_nop 1")
    for r in range(8): A(f"v_add_f32 {v(ACC+r)}, {v(ACC+r)}, {v(ACC+8+r)}")
    A(f"s_lshl_b32 s37, {sCW}, 10")
    A(f"v_lshlrev_b32 {v(T)}, 5, {vN}\nv_lshl_add_u32 {v(T)}, {vG}, 3, {v(T)}\nv_add_u32 {v(T)}, s37, {v(T)}\nv_lshl_add_u32 {v(T+1)}, {vG}, 2, s37")
    for r in range(4): A(f"v_permlane32_swap_b32 {v(ACC+r)}, {v(ACC+4+r)}")
    for r in range(4): A(f"v_add_f32 {v(ACC+r)}, {v(ACC+r)}, {v(ACC+4+r)}")
    A("s_nop 1")
    for r in range(2): A(f"v_permlane16_swap_b32 {v(ACC+r)}, {v(ACC+2+r)}")
    for r in range(2): A(f"v_add_f32 {v(ACC+r)}, {v(ACC+r)}, {v(ACC+2+r)}")
    A(f"ds_write_b64 {v(T)}, {vr(ACC,2)}\nds_write_b32 {v(T+1)}, {vDEN} offset:512\ns_waitcnt lgkmcnt(0)\ns_barrier")
    stamp(5)
    A(f"s_cmp_lg_u32 {sCW}, 0\ns_cbranch_scc1 L_fin")
    A(f"v_lshlrev_b32 {v(T)}, 3, v0\nv_mov_b32 {v(T+1)}, 0")
    for w in range(4): A(f"ds_read_b64 {vr(72+2*w,2)}, {v(T)} offset:{w*1024}")
    for w in range(4): A(f"ds_read_b128 {vr(80+4*w,4)}, {v(T+1)} offset:{w*1024+512}")
    A(f"s_lshl_b32 s37, {sPART}, 10\nv_add_u32 {v(T+2)}, s37, {vVoff}")
    A("s_waitcnt lgkmcnt(4)")
    A("v_pk_add_f32 v[72:73], v[72:73], v[74:75]\nv_pk_add_f32 v[76:77], v[76:77], v[78:79]\nv_pk_add_f32 v[72:73], v[72:73], v[76:77]")
    A("s_waitcnt lgkmcnt(0)")
    A("v_pk_add_f32 v[80:81], v[80:81], v[82:83]\nv_pk_add_f32 v[84:85], v[84:85], v[86:87]\nv_pk_add_f32 v[88:89], v[88:89], v[90:91]\nv_pk_add_f32 v[92:93], v[92:93], v[94:95]")
    A("v_pk_add_f32 v[80:81], v[80:81], v[84:85]\nv_pk_add_f32 v[88:89], v[88:89], v[92:93]\nv_pk_add_f32 v[80:81], v[80:81], v[88:89]")
    A("v_add_f32 v74, v80, v81\nv_mul_f32 v74, 0.5, v74\nv_mov_b32 v75, 0")
    A(f"global_store_dwordx4 {v(T+2)}, v[72:75], s[16:17] offset:1024 sc1")
    A(f"v_mov_b32 {v(T+3)}, 1")
    A("s_waitcnt vmcnt(0)")
    A(f"s_mov_b64 exec, 1\nglobal_atomic_add {v(T+4)}, {v(T+1)}, {v(T+3)}, {sFLG} sc0\ns_waitcnt vmcnt(0)\ns_mov_b64 exec, -1")
    stamp(6)
    A(f"v_readfirstlane_b32 s37, {v(T+4)}\ns_nop 3\ns_and_b32 s37, s37, 0xff\ns_cmp_lg_u32 s37, 3\ns_cbranch_scc1 L_fin")
    A(f"v_add_u32 {v(T+2)}, 1024, {vVoff}")
    for w in range(4): A(f"global_load_dwordx4 {vr(72+4*w,4)}, {v(T+2)}, s[16:17] offset:{w*1024} sc1")
    A(f"s_lshl_b32 s37, {sHEAD}, 8\ns_add_u32 s12, s12, s37\ns_addc_u32 s13, s13, 0\nv_lshlrev_b32 {v(T)}, 2, v0")
    A("s_waitcnt vmcnt(0)")
    A("v_pk_add_f32 v[72:73], v[72:73], v[76:77]\nv_pk_add_f32 v[80:81], v[80:81], v[84:85]\nv_add_f32 v74, v74, v78\nv_add_f32 v82, v82, v86")
    A("v_pk_add_f32 v[72:73], v[72:73], v[80:81]\nv_add_f32 v74, v74, v82\nv_add_f32 v74, s44, v74\nv_rcp_f32 v74, v74\ns_nop 0")
    A("v_mul_f32 v72, v72, v74\nv_mul_f32 v73, v73, v74\nv_cvt_pk_bf16_f32 v72, v72, v73")
    A(f"global_store_dword {v(T)}, v72, s[12:13]")
    A("L_fin:")
    if MST:
        A("s_waitcnt vmcnt(0)\ns_memrealtime s[74:75]\ns_load_dwordx2 s[16:17], s[0:1], 48")
        A(f"s_mul_i32 s19, s2, 5\ns_add_u32 s19, s19, {sWAVE}\ns_lshl_b32 s19, s19, 6")
        A("s_waitcnt lgkmcnt(0)\ns_add_u32 s16, s16, 0x10000000\ns_addc_u32 s17, s17, 0\nv_mov_b32 v1, s19\ns_mov_b64 exec, 1")
        for i in range(4):
            A(f"v_mov_b32 v4, s{60+4*i}\nv_mov_b32 v5, s{61+4*i}\nv_mov_b32 v6, s{62+4*i}\nv_mov_b32 v7, s{63+4*i}\nglobal_store_dwordx4 v1, v[4:7], s[16:17] offset:{16*i}\ns_nop 1")
    A("L_end:\ns_endpgm")
    A(f""".section .rodata,"a"
.p2align 6
.amdhsa_kernel standalone__linear_kernel_rfa__decode_kernel
  .amdhsa_next_free_vgpr {NV}
  .amdhsa_next_free_sgpr 96
  .amdhsa_accum_offset {NV}
  .amdhsa_group_segment_fixed_size 0
  .amdhsa_kernarg_size 56
  .amdhsa_user_sgpr_count 2
  .amdhsa_user_sgpr_kernarg_segment_ptr 1
  .amdhsa_system_sgpr_workgroup_id_x 1
.end_amdhsa_kernel""")
    return "\n".join(L) + "\n"
if __name__ == "__main__":
    kw = {}
    for x in sys.argv[2:]:
        k, val = x.split("=")
        kw[k] = int(val) if (val.lstrip("-").isdigit() and k != "WIN") else val.replace("+", " ")
    open(sys.argv[1], "w").write(gen(**kw))
```

```python
import sys, struct
def f2u(x): return struct.unpack("<I", struct.pack("<f", x))[0]
HEADER = """; Kernarg layout for this problem (56 bytes, ptrs only, base s[0:1]):
"""
def gen(FLAGS="nt", MST=0, MAPX=1, WIN="21", PRIO=3, W0=0, S=32, LAT=0, FAKE=-1, CTL=1, NOFIN=0, FAST=0):
    L = []; A = L.append
    NWG = 256
    LIMIT = 0x200000
    SINC = 0x10000
    wins = [int(c) for c in str(WIN).split(",")]
    W0 = W0 or wins[0]
    VBASE = 49152
    FADDR = 98304
    DYN = S < 32
    assert 8 <= S <= 32
    A(HEADER + f"; @launch grid=({NWG},1,1) block=(320,1,1) lds=98368")
    A('.amdgcn_target "amdgcn-amd-amdhsa--gfx950"\n.text\n.globl standalone__linear_kernel_rfa__decode_kernel\n.p2align 8\n.type standalone__linear_kernel_rfa__decode_kernel,@function\nstandalone__linear_kernel_rfa__decode_kernel:')
    sWAVE, sHEAD, sPART = "s3", "s18", "s19"
    KSRD, VSRD, OSRD, QSRD = "s[20:23]", "s[24:27]", "s[28:31]", "s[48:51]"
    sSC = "s[34:35]"; sMASK = "s36"; sL2E = "s[38:39]"; sISM = "s[42:43]"; sEPS = "s[44:45]"; sFLG = "s[54:55]"
    vDMA = ["v1", "v2", "v3", "v4"]; vRD0 = "v5"; vKA = ["v6", "v7", "v8", "v19"]; vVoff = "v9"; vMA = ["v10", "v11"]
    vM = ["v12", "v13", "v14", "v15"]; vDEN = "v16"; vPQ = ["v17", "v18"]
    AREG, PA, PB, GA, GB, ACC, T, KX, VX = 20, 24, 28, 32, 36, 40, 56, 72, 88
    OM = 104
    vN, vG, vVA, vV0 = "v120", "v121", "v122", "v123"
    vF, vFA = "v124", "v125"
    NV = 128
    def v(i): return f"v{i}"
    def vr(i, n): return f"v[{i}:{i+n-1}]"
    def stamp(k):
        if MST: A(f"s_memrealtime s[{60+2*k}:{61+2*k}]")

    A(f"s_cmp_ge_u32 s2, {NWG}\ns_cbranch_scc1 L_end")
    stamp(0)
    A("s_load_dwordx8 s[4:11], s[0:1], 0")
    A(f"v_lshrrev_b32 {vG}, 6, v0\nv_and_b32 v0, 63, v0")
    A(f"v_and_b32 {vN}, 15, v0\nv_readfirstlane_b32 {sWAVE}, {vG}\nv_lshrrev_b32 {vG}, 4, v0")
    if MAPX:
        A(f"s_lshr_b32 s37, s2, 1\ns_and_b32 {sPART}, s37, 3\ns_xor_b32 s37, s37, s2\ns_and_b32 s37, s37, 1\ns_lshr_b32 {sHEAD}, s2, 3\ns_lshl1_add_u32 {sHEAD}, {sHEAD}, s37")
    else:
        A(f"s_lshr_b32 {sHEAD}, s2, 2\ns_and_b32 {sPART}, s2, 3")
    A(f"v_xor_b32 {vDMA[0]}, {vG}, {vN}\nv_lshlrev_b32 {vDMA[0]}, 4, {vDMA[0]}")
    A(f"s_cmp_lg_u32 {sWAVE}, 0\ns_cbranch_scc1 L_consumer")
    sK = ["s32", "s33", "s40", "s41"]; sV = ["s46", "s47", "s52", "s53"]; sKL, sVL, sP = "s56", "s57", "s58"
    A(f"v_lshl_add_u32 {vDMA[0]}, {vG}, 8, {vDMA[0]}")
    A(f"s_lshl_b32 {sK[0]}, {sPART}, 14\ns_mov_b32 s22, {LIMIT}\ns_mov_b32 s23, 0x20000\ns_lshl_b32 s37, {sHEAD}, 21\ns_mov_b32 m0, 0")
    A(f"v_xor_b32 {vDMA[1]}, 64, {vDMA[0]}\nv_xor_b32 {vDMA[2]}, 0x80, {vDMA[0]}\nv_xor_b32 {vDMA[3]}, 64, {vDMA[2]}")
    for t in range(1, 4): A(f"s_add_u32 {sK[t]}, {sK[0]}, {t*4096}")
    A("s_waitcnt lgkmcnt(0)")
    A("s_add_u32 s20, s6, s37\ns_addc_u32 s21, s7, 0")
    cnt = [0]
    def group(kind, ldsbase, paced_from=0, imm=None):
        for pc in range(4):
            for t in range(4):
                n = pc*4 + t
                if imm is not None: A(f"s_mov_b32 m0, {imm + t*4096}")
                else: A(f"s_add_u32 m0, {ldsbase}, {t*4096}" if t else f"s_mov_b32 m0, {ldsbase}")
                if n >= paced_from:
                    A(f"s_waitcnt vmcnt({wins[cnt[0] % len(wins)] - 1})"); cnt[0] += 1
                else: A("s_nop 0")
                if kind == "K": A(f"buffer_load_dwordx4 {vDMA[pc]}, {KSRD}, {sK[t]} offen offset:{pc*1024} {FLAGS} lds")
                else: A(f"buffer_load_dwordx4 {vVoff}, {VSRD}, {sV[t]} offen offset:{pc*1024} {FLAGS} lds")
    group("K", None, min(16, W0), imm=0)
    if PRIO: A(f"s_setprio {PRIO}")
    for t in range(4): A(f"s_mov_b32 {sV[t]}, {sK[t]}\ns_add_u32 {sK[t]}, {sK[t]}, {SINC}")
    A(f"s_add_u32 s24, s8, s37\ns_addc_u32 s25, s9, 0\ns_mov_b32 s26, {LIMIT}\ns_mov_b32 s27, 0x20000\nv_lshlrev_b32 {vVoff}, 4, v0")
    group("K", None, max(0, W0-16), imm=16384)
    if not DYN:
        A(f"s_mov_b32 {sKL}, 32768\ns_mov_b32 {sVL}, {VBASE}\ns_mov_b32 {sP}, 0")
        A("s_waitcnt vmcnt(16)\ns_barrier")
        stamp(1)
        A("L_lloop:")
        for t in range(4): A(f"s_add_u32 {sK[t]}, {sK[t]}, {SINC}")
        A(f"s_cmp_ge_u32 {sP}, 30\ns_cbranch_scc1 L_lnok")
        group("K", sKL)
        A("L_lnok:")
        group("V", sVL)
        for t in range(4): A(f"s_add_u32 {sV[t]}, {sV[t]}, {SINC}")
        A(f"s_add_u32 {sKL}, {sKL}, 16384\ns_cmp_eq_u32 {sKL}, 49152\ns_cselect_b32 {sKL}, 0, {sKL}")
        A(f"s_add_u32 {sVL}, {sVL}, 16384\ns_cmp_eq_u32 {sVL}, {VBASE+49152}\ns_cselect_b32 {sVL}, {VBASE}, {sVL}")
        A(f"s_add_u32 {sP}, {sP}, 1\ns_cmp_le_u32 {sP}, 30\ns_cbranch_scc1 L_lbar\ns_waitcnt vmcnt(16)\nL_lbar:\ns_barrier")
        if MST:
            for pp, r in ((4, 66), (12, 64), (20, 70), (26, 72)):
                A(f"s_cmp_lg_u32 {sP}, {pp}\ns_cbranch_scc1 L_nost{pp}\ns_memrealtime s[{r}:{r+1}]\nL_nost{pp}:")
        A(f"s_cmp_lt_u32 {sP}, 32\ns_cbranch_scc1 L_lloop")
    else:
        sTK, sEL, sST = "s34", "s35", "s36"
        sCNT, sDBG = "s[16:17]", "s[14:15]"
        A("s_load_dwordx4 s[12:15], s[0:1], 32\ns_load_dwordx2 s[16:17], s[0:1], 48")
        A(f"s_mov_b32 {sKL}, 32768\ns_mov_b32 {sVL}, {VBASE}\ns_mov_b32 {sP}, 0\ns_mov_b32 {sST}, {sK[0]}\ns_mov_b32 {sTK}, 0")
        A(f"v_mov_b32 v10, {FADDR}\nv_mov_b32 v11, 0x7fff\nds_write_b32 v10, v11")
        A(f"s_lshl_b32 s37, {sHEAD}, 13\ns_lshl_b32 s38, {sHEAD}, 2\ns_waitcnt lgkmcnt(0)")
        A("s_add_u32 s16, s16, s37\ns_addc_u32 s17, s17, 0\ns_add_u32 s14, s14, s38\ns_addc_u32 s15, s15, 0")
        A(f"s_mov_b32 {sEL}, 0x100")
        A("s_waitcnt vmcnt(16)\ns_barrier")
        stamp(1)
        if LAT: A("s_mov_b32 s80, 0\ns_mov_b32 s81, 0\ns_mov_b32 s82, 0")
        A("L_lloop:")
        if LAT: A("s_memtime s[84:85]")
        A("s_waitcnt lgkmcnt(0)")
        if LAT:
            A(f"s_memtime s[86:87]\ns_waitcnt lgkmcnt(0)\ns_sub_u32 s86, s86, s84\ns_max_u32 s80, s80, s86\ns_cmp_lt_u32 {sP}, 17\ns_cselect_b32 s87, s86, 0\ns_add_u32 s81, s81, s87\ns_sub_u32 s86, s86, s87\ns_add_u32 s82, s82, s86")
        assert S >= 20
        A(f"s_cmp_lt_u32 {sP}, 16\ns_cbranch_scc1 L_lctl")
        A(f"s_cmp_lt_u32 {sP}, {S-3}\ns_cbranch_scc1 L_lstatic")
        A(f"s_cmp_eq_u32 {sP}, {S-3}\ns_cbranch_scc1 L_lctl_check")
        if FAKE < 0: A(f"s_lshl_b32 s37, {sTK}, 14\ns_add_u32 s37, s37, {4*S*16384}\ns_mov_b32 {sTK}, 1\ns_atomic_add {sTK}, {sCNT}, 0x0 glc\ns_branch L_lhave")
        elif FAKE & 16: A(f"s_mov_b32 {sTK}, 1\ns_atomic_add {sTK}, {sCNT}, 0x0 glc")
        A(f"L_lstatic:\ns_add_u32 {sST}, {sST}, {SINC}\ns_mov_b32 s37, {sST}")
        A("L_lhave:")
        A(f"s_mov_b32 s38, {sK[0]}")
        for t in range(4): A(f"s_add_u32 {sK[t]}, s37, {t*4096}")
        A(f"s_cmp_ge_u32 s37, {LIMIT}\ns_cbranch_scc1 L_lnok")
        group("K", sKL)
        A("L_lkdone:")
        group("V", sVL)
        for t in range(4): A(f"s_add_u32 {sV[t]}, s38, {t*4096}")
        A(f"s_add_u32 {sKL}, {sKL}, 16384\ns_cmp_eq_u32 {sKL}, 49152\ns_cselect_b32 {sKL}, 0, {sKL}")
        A(f"s_add_u32 {sVL}, {sVL}, 16384\ns_cmp_eq_u32 {sVL}, {VBASE+49152}\ns_cselect_b32 {sVL}, {VBASE}, {sVL}")
        A(f"s_add_u32 {sP}, {sP}, 1\ns_cmp_lt_u32 {sK[0]}, {LIMIT}\ns_cbranch_scc1 L_lbar\ns_waitcnt vmcnt(16) lgkmcnt(0)\nL_lbar:\ns_barrier")
        if MST:
            for pp, r in ((4, 66), (12, 64), (20, 70), (26, 72)):
                A(f"s_cmp_lg_u32 {sP}, {pp}\ns_cbranch_scc1 L_nost{pp}\ns_memrealtime s[{r}:{r+1}]\nL_nost{pp}:")
        A(f"s_cmp_lt_u32 {sV[0]}, {LIMIT}\ns_cbranch_scc1 L_lloop")
        A("s_branch L_ldone")
        A(f"L_lnok:\ns_add_u32 s37, {sP}, 2\nv_mov_b32 v11, s37\nds_min_u32 v10, v11\ns_branch L_lkdone")
        A(f"L_lctl:\ns_sub_u32 s37, {sP}, {sPART}\ns_cmp_eq_u32 s37, 0\ns_cbranch_scc1 L_lctl_elect")
        A(f"s_sub_u32 s38, s37, {sPART}\ns_cmp_eq_u32 s38, 8\ns_cbranch_scc1 L_lctl_poll")
        A(f"s_sub_u32 s37, s37, 1\ns_cmp_gt_u32 s37, 1\ns_cbranch_scc1 L_lstatic")
        A(f"s_and_b32 s38, {sEL}, 0xff00\ns_cmp_lg_u32 s38, 0\ns_cbranch_scc1 L_lstatic")
        A(f"s_cmp_eq_u32 s37, 0\ns_cbranch_scc0 L_lctl_flag")
        A((f"s_atomic_swap {sTK}, {sCNT}, 0x0 glc\n" if FAKE & 2 else "") + "s_branch L_lstatic")
        A("L_lctl_elect:\n" + (f"s_atomic_add {sEL}, {sDBG}, 0x0 glc\n" if (FAKE & 1 and CTL == 1) else f"s_lshl_b32 {sEL}, {sPART}, 8\n") + "s_branch L_lstatic")
        A(f"L_lctl_flag:\ns_mov_b32 {sTK}, 0x10000\n" + (f"s_atomic_add {sTK}, {sDBG}, 0x0 glc\n" if FAKE & 4 else "") + "s_branch L_lstatic")
        if CTL == 1:
            A(f"L_lctl_poll:\ns_mov_b32 {sTK}, 0\n" + (f"s_atomic_add {sTK}, {sDBG}, 0x0 glc\n" if FAKE & 8 else "") + "s_branch L_lstatic")
        else:
            A(f"L_lctl_poll:\nv_mov_b32 v12, 0\ns_mov_b64 exec, 1\n" + (f"global_load_dword v12, v12, {sDBG} sc1\n" if FAKE & 8 else "") + "s_mov_b64 exec, -1\ns_branch L_lstatic")
        A(f"L_lctl_check:")
        if FAKE >= 0: A("s_branch L_lstatic")
        if CTL == 2: A(f"v_readfirstlane_b32 {sTK}, v12\ns_nop 3\nL_lctl_check2:")
        A(f"s_bitcmp1_b32 {sTK}, 16\ns_cbranch_scc1 L_lctl_ok")
        A(f"s_sleep 4\ns_mov_b32 {sTK}, 0\ns_atomic_add {sTK}, {sDBG}, 0x0 glc\ns_waitcnt lgkmcnt(0)\ns_branch L_lctl_check{'2' if CTL == 2 else ''}")
        A(f"L_lctl_ok:\ns_mov_b32 {sTK}, 1\ns_atomic_add {sTK}, {sCNT}, 0x0 glc\ns_branch L_lstatic")
        A("L_ldone:")
    A("s_waitcnt vmcnt(0)")
    stamp(4)
    A("s_barrier")
    if MST:
        A(f"s_add_u32 s62, s60, {sP}\ns_addc_u32 s63, s61, 0")
        if LAT:
            for dst, src in ((64, 80), (70, 81), (72, 82)):
                A(f"s_mul_i32 s37, s{src}, 2731\ns_lshr_b32 s37, s37, 16\ns_add_u32 s{dst}, s60, s37\ns_addc_u32 s{dst+1}, s61, 0")
        A("s_branch L_fin")
    else:
        A("s_endpgm")

    A("L_consumer:")
    sCW, sKS, sVS, sIT = "s59", "s32", "s33", "s41"
    A("s_load_dwordx4 s[12:15], s[0:1], 32\ns_load_dwordx2 s[16:17], s[0:1], 48")
    A(f"s_sub_u32 {sCW}, {sWAVE}, 1\ns_lshl_b32 s37, {sCW}, 12")
    A(f"v_lshl_add_u32 {vRD0}, {vN}, 8, {vDMA[0]}\nv_add_u32 {vRD0}, s37, {vRD0}")
    A(f"v_lshlrev_b32 {vVoff}, 4, v0\nv_add_u32 {vV0}, s37, {vVoff}")
    A(f"v_and_b32 {v(T)}, 7, v0\nv_lshlrev_b32 {v(T)}, 8, {v(T)}\nv_lshlrev_b32 {v(T+1)}, 4, {vG}\nv_add_u32 {v(T)}, {v(T)}, {v(T+1)}")
    A(f"s_mov_b32 s30, 2048\ns_mov_b32 s31, 0x20000\ns_mov_b32 s50, 16384\ns_mov_b32 s51, 0x20000\ns_lshl_b32 s46, {sHEAD}, 8")
    A("s_waitcnt lgkmcnt(0)")
    A("s_mov_b32 s28, s10\ns_mov_b32 s29, s11\ns_mov_b32 s48, s4\ns_mov_b32 s49, s5")
    for c in range(4): A(f"buffer_load_dwordx4 {vr(OM+c*4,4)}, {v(T)}, {OSRD}, 0 offen offset:{c*64}")
    for c in range(4): A(f"buffer_load_dwordx4 {vr(KX+c*4,4)}, {v(T+1)}, {QSRD}, s46 offen offset:{c*64}")
    if MST: A("s_mov_b64 s[70:71], 0\ns_mov_b64 s[72:73], 0\ns_mov_b64 s[62:63], 0")
    sc = f2u(128.0 ** -0.25); l2e = f2u(1.4426950408889634); ism = f2u(8.0 ** -0.5); eps = f2u(1e-6)
    A(f"s_mov_b32 s34, {sc:#x}\ns_mov_b32 s35, {sc:#x}\ns_mov_b32 {sMASK}, 0xffff0000\ns_mov_b32 s38, {l2e:#x}\ns_mov_b32 s39, {l2e:#x}")
    A(f"s_mov_b32 s42, {ism:#x}\ns_mov_b32 s43, {ism:#x}\ns_mov_b32 s44, {eps:#x}\ns_mov_b32 s45, {eps:#x}")
    A(f"s_mov_b32 {sKS}, 0\ns_mov_b32 {sVS}, {VBASE+16384}\ns_mov_b32 {sIT}, 0")
    A(f"s_lshl_b32 s37, {sHEAD}, 13\ns_lshl_b32 s46, {sHEAD}, 2")
    A("s_add_u32 s16, s16, s37\ns_addc_u32 s17, s17, 0\ns_add_u32 s54, s14, s46\ns_addc_u32 s55, s15, 0")
    A(f"v_and_b32 {v(T+2)}, 1, v0\nv_lshlrev_b32 {v(T+2)}, 4, {v(T+2)}\nv_mov_b32 {v(T+3)}, 0xffff\nv_lshlrev_b32 {v(T+2)}, {v(T+2)}, {v(T+3)}\nv_and_b32 {v(T+3)}, 2, v0\nv_cmp_ne_u32 vcc, 0, {v(T+3)}\ns_nop 1")
    A(f"v_cndmask_b32_e64 {vMA[0]}, {v(T+2)}, 0, vcc\nv_cndmask_b32_e64 {vMA[1]}, 0, {v(T+2)}, vcc")
    A(f"v_lshlrev_b32 {v(T+2)}, 2, {vG}\nv_sub_u32 {v(T+2)}, {vN}, {v(T+2)}")
    for r in range(4):
        A(f"v_cmp_eq_u32 vcc, {r}, {v(T+2)}\ns_nop 1\nv_cndmask_b32_e64 {vM[r]}, 0, -1, vcc")
    A(f"v_mov_b32 {vDEN}, 0")
    for i in range(16): A(f"v_mov_b32 {v(ACC+i)}, 0")

    def scale_a(x):
        for i in range(4):
            A(f"v_lshlrev_b32 {v(T+2*i)}, 16, {v(x+i)}\nv_and_b32 {v(T+2*i+1)}, {sMASK}, {v(x+i)}")
    def scale_b(x):
        for i in range(4): A(f"v_pk_mul_f32 {vr(T+2*i,2)}, {vr(T+2*i,2)}, {sSC}")
        for i in range(4): A(f"v_cvt_pk_bf16_f32 {v(x+i)}, {v(T+2*i)}, {v(T+2*i+1)}")
    def mf(x, P, G, c):
        A(f"v_mfma_f32_16x16x32_bf16 {vr(P,4)}, {vr(OM+c*4,4)}, {vr(x+c*4,4)}, {'0' if c == 0 else vr(P,4)}")
        A(f"v_mfma_f32_16x16x32_bf16 {vr(G,4)}, {vr(x+c*4,4)}, {vr(x+c*4,4)}, {'0' if c == 0 else vr(G,4)}")
    def ktile(x, P, G, waits=False):
        for c in range(4):
            if waits: A(f"s_waitcnt lgkmcnt({7-c})")
            scale_a(x + c*4)
            if c > 0: mf(x, P, G, c-1)
            scale_b(x + c*4)
        A("s_nop 1"); mf(x, P, G, 3)
    def vtile(sl):
        for b in range(4):
            r = VX + b*4
            a0 = ACC + (b & 1)*8
            A(f"v_mfma_f32_4x4x4_16b_bf16 {vr(a0,4)}, {vr(AREG+2*sl,2)}, {vr(r,2)}, {vr(a0,4)} cbsz:2 abid:{b}")
            A(f"v_mfma_f32_4x4x4_16b_bf16 {vr(a0+4,4)}, {vr(AREG+2*sl,2)}, {vr(r+2,2)}, {vr(a0+4,4)} cbsz:2 abid:{b}")
    def unp4():
        A(f"v_lshlrev_b32 {v(T)}, 16, {v(T+4)}\nv_and_b32 {v(T+1)}, {sMASK}, {v(T+4)}\nv_lshlrev_b32 {v(T+2)}, 16, {v(T+5)}\nv_and_b32 {v(T+3)}, {sMASK}, {v(T+5)}")
    def rnd4():
        A(f"v_cvt_pk_bf16_f32 {v(T+4)}, {v(T)}, {v(T+1)}\nv_cvt_pk_bf16_f32 {v(T+5)}, {v(T+2)}, {v(T+3)}")
        unp4()
    def phi(P, Sq, d0, d1):
        A(f"v_cvt_pk_bf16_f32 {v(T+6)}, {Sq}, {Sq}")
        A(f"v_cvt_pk_bf16_f32 {v(T+4)}, {v(P)}, {v(P+1)}\nv_cvt_pk_bf16_f32 {v(T+5)}, {v(P+2)}, {v(P+3)}")
        A(f"v_and_b32 {v(T+6)}, {sMASK}, {v(T+6)}")
        unp4()
        for i in range(4): A(f"v_fma_f32 {v(T+i)}, {v(T+6)}, -0.5, {v(T+i)}")
        rnd4()
        A(f"v_pk_mul_f32 {vr(T,2)}, {vr(T,2)}, {sL2E}\nv_pk_mul_f32 {vr(T+2,2)}, {vr(T+2,2)}, {sL2E}")
        for i in range(4): A(f"v_exp_f32 {v(T+i)}, {v(T+i)}")
        rnd4()
        A(f"v_pk_mul_f32 {vr(T,2)}, {vr(T,2)}, {sISM}\nv_pk_mul_f32 {vr(T+2,2)}, {vr(T+2,2)}, {sISM}")
        rnd4()
        A(f"v_pk_add_f32 {vr(T,2)}, {vr(T,2)}, {sEPS}\nv_pk_add_f32 {vr(T+2,2)}, {vr(T+2,2)}, {sEPS}")
        A(f"v_cvt_pk_bf16_f32 {d0}, {v(T)}, {v(T+1)}\nv_cvt_pk_bf16_f32 {d1}, {v(T+2)}, {v(T+3)}")
    def elementwise():
        a, b = v(T+8), v(T+9)
        A(f"v_and_b32 {a}, {v(GA)}, {vM[0]}\nv_and_b32 {b}, {v(GB)}, {vM[0]}")
        for r in range(1, 4):
            A(f"v_and_or_b32 {a}, {v(GA+r)}, {vM[r]}, {a}\nv_and_or_b32 {b}, {v(GB+r)}, {vM[r]}, {b}")
        for r in range(2): A(f"v_permlane32_swap_b32 {v(PA+r)}, {v(PB+r)}")
        A(f"v_permlane32_swap_b32 {a}, {b}\nv_or_b32 {a}, {a}, {b}\nv_mov_b32 {b}, {a}")
        for r in range(2, 4): A(f"v_permlane32_swap_b32 {v(PA+r)}, {v(PB+r)}")
        A(f"v_permlane16_swap_b32 {a}, {b}\nv_or_b32 {a}, {a}, {b}")
        phi(PA, a, v(T+10), v(T+11))
        w, t, ua, ub = v(T+12), v(T+13), v(T+14), v(T+15)
        A(f"v_dot2_f32_bf16 {w}, {v(T+10)}, {vPQ[0]}, 0\nv_dot2_f32_bf16 {w}, {v(T+11)}, {vPQ[1]}, {w}")
        A(f"s_nop 2\nv_mov_b32 {t}, {w}\ns_nop 1\nv_permlane16_swap_b32 {w}, {t}\nv_add_f32 {w}, {w}, {t}")
        if DYN: A(f"v_cndmask_b32_e64 {w}, 0, {w}, s[56:57]")
        A(f"v_cvt_pk_bf16_f32 {w}, {w}, {w}\nv_mov_b32 {t}, {w}\nv_and_b32 {ua}, {sMASK}, {w}\nv_add_f32 {vDEN}, {vDEN}, {ua}")
        A(f"v_permlane32_swap_b32 {w}, {t}\ns_nop 1")
        for g in range(4):
            A(f"v_mov_b32_dpp {ua}, {w} quad_perm:[{g},{g},{g},{g}] row_mask:{1<<g:#x} bank_mask:0xf")
            A(f"v_mov_b32_dpp {ub}, {t} quad_perm:[{g},{g},{g},{g}] row_mask:{1<<g:#x} bank_mask:0xf")
        A(f"v_and_b32 {v(AREG)}, {ua}, {vMA[0]}\nv_and_b32 {v(AREG+1)}, {ua}, {vMA[1]}\nv_and_b32 {v(AREG+2)}, {ub}, {vMA[0]}\nv_and_b32 {v(AREG+3)}, {ub}, {vMA[1]}")
    def addrs(k=True):
        if k:
            A(f"v_add_u32 {vKA[0]}, {sKS}, {vRD0}\nv_xor_b32 {vKA[1]}, 64, {vKA[0]}\nv_xor_b32 {vKA[2]}, 0x80, {vKA[0]}\nv_xor_b32 {vKA[3]}, 64, {vKA[2]}")
            A(f"s_add_u32 {sKS}, {sKS}, 16384\ns_cmp_eq_u32 {sKS}, 49152\ns_cselect_b32 {sKS}, 0, {sKS}")
        A(f"v_add_u32 {vVA}, {sVS}, {vV0}")
        A(f"s_add_u32 {sVS}, {sVS}, 16384\ns_cmp_eq_u32 {sVS}, {VBASE+49152}\ns_cselect_b32 {sVS}, {VBASE}, {sVS}")
    def vreads():
        for b in range(4): A(f"ds_read_b128 {vr(VX+b*4,4)}, {vVA} offset:{b*1024}")

    if FAST:
        assert not DYN
        A(f"s_or_b32 s47, {sPART}, {sCW}\ns_cmp_lg_u32 s47, 0\ns_cbranch_scc1 L_noclr")
        A(f"v_mov_b32 {v(VX)}, -1\nv_mov_b32 {v(VX+1)}, -1\nv_mov_b32 {v(VX+2)}, -1\nv_mov_b32 {v(VX+3)}, -1\nv_add_u32 {v(VX+4)}, 1024, {vVoff}")
        for w in range(4): A(f"global_store_dwordx4 {v(VX+4)}, {vr(VX,4)}, s[16:17] offset:{w*1024} sc1")
        if FAST >= 2: A(f"v_mov_b32 {v(VX+6)}, 0\ns_mov_b64 exec, 1\nglobal_store_dword {v(VX+6)}, {v(VX+6)}, s[16:17] sc1\ns_mov_b64 exec, -1")
        A("L_noclr:")
    A("s_waitcnt vmcnt(0)")
    if FAST:
        A(f"s_cmp_lg_u32 s47, 0\ns_cbranch_scc1 L_noflag")
        if FAST >= 3: A(f"v_mov_b32 {v(VX+4)}, 0\nv_mov_b32 {v(VX+5)}, 0x100\ns_mov_b64 exec, 1\nglobal_store_dword {v(VX+4)}, {v(VX+5)}, {sFLG} sc1\ns_mov_b64 exec, -1")
        else: A(f"v_mov_b32 {v(VX+4)}, 0\nv_mov_b32 {v(VX+5)}, 0x100\ns_mov_b64 exec, 1\nglobal_atomic_add {v(VX+4)}, {v(VX+5)}, {sFLG}\ns_mov_b64 exec, -1")
        A(f"L_noflag:\nv_mov_b32 {vF}, 0\n" + (f"s_mov_b32 s52, 15" if FAST >= 3 else f"s_lshl_b32 s52, {sPART}, 1\ns_add_u32 s52, s52, 4") + f"\ns_cmp_eq_u32 {sCW}, 0\ns_cselect_b32 s52, s52, -1")
    ktile(KX, PA, GA)
    A("s_nop 7")
    phi(PA, v(GA), vPQ[0], vPQ[1])
    stamp(2)
    sNS, sWM = "s58", "s[56:57]"
    if DYN: A(f"v_mov_b32 {vFA}, {FADDR}\ns_mov_b32 s56, -1")
    A(".p2align 6\nL_loop:")
    for sl in range(2):
        addrs()
        A("s_barrier")
        if DYN and sl == 1: A(f"ds_read_b32 {vF}, {vFA}")
        for c in range(4): A(f"ds_read_b128 {vr(KX+c*4,4)}, {vKA[c]}")
        vreads()
        ktile(KX, PA if sl == 0 else PB, GA if sl == 0 else GB, waits=True)
        A(f"s_cmp_eq_u32 {sIT}, 0\ns_waitcnt lgkmcnt(0)\ns_cbranch_scc1 L_novt{sl}")
        vtile(sl)
        A(f"L_novt{sl}:")
    if DYN:
        A(f"v_readfirstlane_b32 {sNS}, {vF}\ns_lshl1_add_u32 s37, {sIT}, 1\ns_nop 3\ns_cmp_lt_u32 s37, {sNS}\ns_cselect_b32 s57, -1, 0")
    A("s_nop 7")
    elementwise()
    if FAST: A(f"s_cmp_lg_u32 {sIT}, s52\ns_cbranch_scc1 L_nopoll\ns_mov_b64 exec, 1\nglobal_load_dword {vF}, {vF}, {sFLG} sc1\ns_mov_b64 exec, -1\nL_nopoll:")
    if MST: A(f"s_cmp_lg_u32 {sIT}, 1\ns_cbranch_scc1 L_nost\ns_memrealtime s[66:67]\nL_nost:")
    if DYN:
        A(f"s_add_u32 {sIT}, {sIT}, 1\ns_lshl_b32 s37, {sIT}, 1\ns_cmp_lt_u32 s37, {sNS}\ns_cbranch_scc1 L_loop")
    else:
        A(f"s_add_u32 {sIT}, {sIT}, 1\ns_cmp_lt_u32 {sIT}, 16\ns_cbranch_scc1 L_loop")
    for sl in range(2):
        if DYN and sl == 1: A(f"s_bitcmp1_b32 {sNS}, 0\ns_cbranch_scc1 L_vdone")
        addrs(False)
        if FAST and sl == 1:
            A(f"s_cmp_lg_u32 {sCW}, 0\ns_cbranch_scc1 L_flagok\ns_waitcnt vmcnt(0)")
            A(f"L_flagchk:\nv_readfirstlane_b32 s37, {vF}\ns_nop 3\ns_bitcmp1_b32 s37, 8\ns_cbranch_scc1 L_flagok")
            A(f"v_mov_b32 {vF}, 0\nglobal_load_dword {vF}, {vF}, {sFLG} sc1\ns_waitcnt vmcnt(0)\ns_branch L_flagchk")
            A(f"L_flagok:\nv_add_u32 {vFA}, 1024, {vVoff}\nv_mov_b32 {v(T+14)}, 0\nv_mov_b32 {v(T+15)}, 1")
        A("s_barrier")
        if FAST and sl == 1:
            A(f"s_cmp_lg_u32 {sCW}, 0\ns_cbranch_scc1 L_nopre")
            if FAST >= 2: A(f"s_mov_b64 exec, 1\nglobal_atomic_add {vF}, {v(T+14)}, {v(T+15)}, s[16:17] sc0\ns_mov_b64 exec, -1")
            for w in range(4): A(f"global_load_dwordx4 {vr(OM+4*w,4)}, {vFA}, s[16:17] offset:{w*1024} sc1")
            A("L_nopre:")
        vreads()
        A("s_waitcnt lgkmcnt(0)")
        vtile(sl)
    A("L_vdone:")
    stamp(4)
    for sh in (8, 4, 2, 1):
        A(f"v_add_f32_dpp {vDEN}, {vDEN}, {vDEN} row_ror:{sh} row_mask:0xf bank_mask:0xf\ns_nop 1")
    for r in range(8): A(f"v_add_f32 {v(ACC+r)}, {v(ACC+r)}, {v(ACC+8+r)}")
    A(f"s_lshl_b32 s37, {sCW}, 10")
    A(f"v_lshlrev_b32 {v(T)}, 5, {vN}\nv_lshl_add_u32 {v(T)}, {vG}, 3, {v(T)}\nv_add_u32 {v(T)}, s37, {v(T)}\nv_lshl_add_u32 {v(T+1)}, {vG}, 2, s37")
    for r in range(4): A(f"v_permlane32_swap_b32 {v(ACC+r)}, {v(ACC+4+r)}")
    for r in range(4): A(f"v_add_f32 {v(ACC+r)}, {v(ACC+r)}, {v(ACC+4+r)}")
    A("s_nop 1")
    for r in range(2): A(f"v_permlane16_swap_b32 {v(ACC+r)}, {v(ACC+2+r)}")
    for r in range(2): A(f"v_add_f32 {v(ACC+r)}, {v(ACC+r)}, {v(ACC+2+r)}")
    A(f"ds_write_b64 {v(T)}, {vr(ACC,2)}\nds_write_b32 {v(T+1)}, {vDEN} offset:512\ns_waitcnt lgkmcnt(0)\ns_barrier")
    stamp(5)
    A(f"s_cmp_lg_u32 {sCW}, 0\ns_cbranch_scc1 L_fin")
    A(f"v_lshlrev_b32 {v(T)}, 3, v0\nv_mov_b32 {v(T+1)}, 0")
    for w in range(4): A(f"ds_read_b64 {vr(72+2*w,2)}, {v(T)} offset:{w*1024}")
    for w in range(4): A(f"ds_read_b128 {vr(80+4*w,4)}, {v(T+1)} offset:{w*1024+512}")
    A(f"s_lshl_b32 s37, {sPART}, 10\nv_add_u32 {v(T+2)}, s37, {vVoff}")
    A("s_waitcnt lgkmcnt(4)")
    A("v_pk_add_f32 v[72:73], v[72:73], v[74:75]\nv_pk_add_f32 v[76:77], v[76:77], v[78:79]\nv_pk_add_f32 v[72:73], v[72:73], v[76:77]")
    A("s_waitcnt lgkmcnt(0)")
    A("v_pk_add_f32 v[80:81], v[80:81], v[82:83]\nv_pk_add_f32 v[84:85], v[84:85], v[86:87]\nv_pk_add_f32 v[88:89], v[88:89], v[90:91]\nv_pk_add_f32 v[92:93], v[92:93], v[94:95]")
    A("v_pk_add_f32 v[80:81], v[80:81], v[84:85]\nv_pk_add_f32 v[88:89], v[88:89], v[92:93]\nv_pk_add_f32 v[80:81], v[80:81], v[88:89]")
    A("v_add_f32 v74, v80, v81\nv_mul_f32 v74, 0.5, v74\nv_mov_b32 v75, 0")
    if FAST:
        R = OM
        def check(lbl_ok):
            for k in range(4):
                A(f"s_cmp_lg_u32 {sPART}, {k}\ns_cbranch_scc1 L_np{lbl_ok}{k}\nv_mov_b32 {v(R+4*k)}, v72\nv_mov_b32 {v(R+4*k+1)}, v73\nv_mov_b32 {v(R+4*k+2)}, v74\nL_np{lbl_ok}{k}:")
            A(f"v_max3_u32 v76, {v(R)}, {v(R+1)}, {v(R+2)}\nv_max3_u32 v77, {v(R+4)}, {v(R+5)}, {v(R+6)}\nv_max3_u32 v78, {v(R+8)}, {v(R+9)}, {v(R+10)}\nv_max3_u32 v79, {v(R+12)}, {v(R+13)}, {v(R+14)}")
            A(f"v_max3_u32 v76, v76, v77, v78\nv_max_u32 v76, v76, v79\nv_cmp_eq_u32 vcc, -1, v76\ns_cbranch_vccz {lbl_ok}")
        A("v_min_u32 v72, -2, v72\nv_min_u32 v73, -2, v73\nv_min_u32 v74, -2, v74")
        A(f"s_lshl_b32 s37, {sHEAD}, 8\ns_add_u32 s12, s12, s37\ns_addc_u32 s13, s13, 0\nv_lshlrev_b32 {v(T)}, 2, v0\nv_mov_b32 {v(T+3)}, 1")
        if FAST >= 2:
            A(f"s_waitcnt vmcnt(4)\nv_readfirstlane_b32 s37, {vF}\ns_nop 3\ns_cmp_eq_u32 s37, 3\ns_cbranch_scc1 L_last")
            A(f"global_store_dwordx4 {v(T+2)}, v[72:75], s[16:17] offset:1024 sc1\ns_branch L_fin")
            A("L_reload:")
            for w in range(4): A(f"global_load_dwordx4 {vr(R+4*w,4)}, {vFA}, s[16:17] offset:{w*1024} sc1")
            A("L_last:")
            stamp(6)
            A("s_waitcnt vmcnt(0)")
            check("L_out")
            A("s_branch L_reload")
        if FAST == 1: A("s_waitcnt vmcnt(0)")
        if FAST == 1: check("L_out")
        if FAST == 1:
            A(f"global_store_dwordx4 {v(T+2)}, v[72:75], s[16:17] offset:1024 sc1")
            A("s_waitcnt vmcnt(0)")
            A(f"s_mov_b64 exec, 1\nglobal_atomic_add {v(T+4)}, {v(T+1)}, {v(T+3)}, {sFLG} sc0\ns_waitcnt vmcnt(0)\ns_mov_b64 exec, -1")
            stamp(6)
            A(f"v_readfirstlane_b32 s37, {v(T+4)}\ns_nop 3\ns_and_b32 s37, s37, 0xff\ns_cmp_lg_u32 s37, 3\ns_cbranch_scc1 L_fin")
            A("L_reload:")
            for w in range(4): A(f"global_load_dwordx4 {vr(R+4*w,4)}, {vFA}, s[16:17] offset:{w*1024} sc1")
            A("s_waitcnt vmcnt(0)")
            check("L_out2")
            A("s_branch L_reload")
        A("L_out:\nL_out2:")
        A(f"v_pk_add_f32 {vr(R,2)}, {vr(R,2)}, {vr(R+4,2)}\nv_pk_add_f32 {vr(R+8,2)}, {vr(R+8,2)}, {vr(R+12,2)}\nv_add_f32 v74, {v(R+2)}, {v(R+6)}\nv_add_f32 v82, {v(R+10)}, {v(R+14)}")
        A(f"v_pk_add_f32 v[72:73], {vr(R,2)}, {vr(R+8,2)}\nv_add_f32 v74, v74, v82\nv_add_f32 v74, s44, v74\nv_rcp_f32 v74, v74\ns_nop 0")
        A("v_mul_f32 v72, v72, v74\nv_mul_f32 v73, v73, v74\nv_cvt_pk_bf16_f32 v72, v72, v73")
        A(f"global_store_dword {v(T)}, v72, s[12:13]")
    else:
        if NOFIN == 1: A("s_branch L_fin")
        A(f"global_store_dwordx4 {v(T+2)}, v[72:75], s[16:17] offset:1024 sc1")
        if NOFIN == 2: A("s_branch L_fin")
        A(f"v_mov_b32 {v(T+3)}, 1")
        A("s_waitcnt vmcnt(0)")
        A(f"s_mov_b64 exec, 1\nglobal_atomic_add {v(T+4)}, {v(T+1)}, {v(T+3)}, {sFLG} sc0\ns_waitcnt vmcnt(0)\ns_mov_b64 exec, -1")
        stamp(6)
        A(f"v_readfirstlane_b32 s37, {v(T+4)}\ns_nop 3\ns_and_b32 s37, s37, 0xff\ns_cmp_lg_u32 s37, 3\ns_cbranch_scc1 L_fin")
        A(f"v_add_u32 {v(T+2)}, 1024, {vVoff}")
        for w in range(4): A(f"global_load_dwordx4 {vr(72+4*w,4)}, {v(T+2)}, s[16:17] offset:{w*1024} sc1")
        A(f"s_lshl_b32 s37, {sHEAD}, 8\ns_add_u32 s12, s12, s37\ns_addc_u32 s13, s13, 0\nv_lshlrev_b32 {v(T)}, 2, v0")
        A("s_waitcnt vmcnt(0)")
        A("v_pk_add_f32 v[72:73], v[72:73], v[76:77]\nv_pk_add_f32 v[80:81], v[80:81], v[84:85]\nv_add_f32 v74, v74, v78\nv_add_f32 v82, v82, v86")
        A("v_pk_add_f32 v[72:73], v[72:73], v[80:81]\nv_add_f32 v74, v74, v82\nv_add_f32 v74, s44, v74\nv_rcp_f32 v74, v74\ns_nop 0")
        A("v_mul_f32 v72, v72, v74\nv_mul_f32 v73, v73, v74\nv_cvt_pk_bf16_f32 v72, v72, v73")
        A(f"global_store_dword {v(T)}, v72, s[12:13]")
    A("L_fin:")
    if MST:
        A("s_waitcnt vmcnt(0)\ns_memrealtime s[74:75]\ns_load_dwordx2 s[16:17], s[0:1], 48")
        A(f"s_mul_i32 s19, s2, 5\ns_add_u32 s19, s19, {sWAVE}\ns_lshl_b32 s19, s19, 6")
        A("s_waitcnt lgkmcnt(0)\ns_add_u32 s16, s16, 0x10000000\ns_addc_u32 s17, s17, 0\nv_mov_b32 v1, s19\ns_mov_b64 exec, 1")
        for i in range(4):
            A(f"v_mov_b32 v4, s{60+4*i}\nv_mov_b32 v5, s{61+4*i}\nv_mov_b32 v6, s{62+4*i}\nv_mov_b32 v7, s{63+4*i}\nglobal_store_dwordx4 v1, v[4:7], s[16:17] offset:{16*i}\ns_nop 1")
    A("L_end:\ns_endpgm")
    A(f""".section .rodata,"a"
.p2align 6
.amdhsa_kernel standalone__linear_kernel_rfa__decode_kernel
  .amdhsa_next_free_vgpr {NV}
  .amdhsa_next_free_sgpr 96
  .amdhsa_accum_offset {NV}
  .amdhsa_group_segment_fixed_size 0
  .amdhsa_kernarg_size 56
  .amdhsa_user_sgpr_count 2
  .amdhsa_user_sgpr_kernarg_segment_ptr 1
  .amdhsa_system_sgpr_workgroup_id_x 1
.end_amdhsa_kernel""")
    return "\n".join(L) + "\n"
if __name__ == "__main__":
    kw = {}
    for x in sys.argv[2:]:
        k, val = x.split("=")
        kw[k] = int(val) if (val.lstrip("-").isdigit() and k != "WIN") else val.replace("+", " ")
    open(sys.argv[1], "w").write(gen(**kw))
```

```python
import sys, struct
def f2u(x): return struct.unpack("<I", struct.pack("<f", x))[0]
HEADER = """; Kernarg layout for this problem (56 bytes, ptrs only, base s[0:1]):
"""
def gen(FLAGS="nt", MST=0, WIN="20", XG=0, XOFF=2, LOOSE="21,21,21,20", STRICT="20,20,19,20", TOUCH=1, PRIO=3, EARLYRANK=0):
    L = []; A = L.append
    NWG = 256; LIMIT = 0x200000; SINC = 0x10000
    VBASE = 49152; DENLDS = 98304; OMLDS = 98368
    wins = [int(c) for c in str(WIN).split(",")]
    loose = [int(c) for c in LOOSE.split(",")]; strict = [int(c) for c in STRICT.split(",")]
    A(HEADER + f"; @launch grid=({NWG},1,1) block=(320,1,1) lds={OMLDS + 3072}")
    A('.amdgcn_target "amdgcn-amd-amdhsa--gfx950"\n.text\n.globl standalone__linear_kernel_rfa__decode_kernel\n.p2align 12\n.p2align 8\n.type standalone__linear_kernel_rfa__decode_kernel,@function\nstandalone__linear_kernel_rfa__decode_kernel:')
    sWAVE, sHEAD, sPART = "s3", "s18", "s19"
    KSRD, VSRD, OSRD = "s[20:23]", "s[24:27]", "s[28:31]"
    vDMA = ["v1", "v2", "v3", "v4"]; vVoff = "v9"
    vN, vG = "v120", "v121"
    def v(i): return f"v{i}"
    def vr(i, n): return f"v[{i}:{i+n-1}]"
    def stamp(k):
        if MST: A(f"s_memrealtime s[{60+2*k}:{61+2*k}]")

    A(f"s_cmp_ge_u32 s2, {NWG}\ns_cbranch_scc1 L_end")
    stamp(0)
    A("s_load_dwordx8 s[4:11], s[0:1], 0")
    A(f"v_lshrrev_b32 {vG}, 6, v0\nv_and_b32 v0, 63, v0")
    A(f"v_and_b32 {vN}, 15, v0\nv_readfirstlane_b32 {sWAVE}, {vG}\nv_lshrrev_b32 {vG}, 4, v0")
    A(f"s_lshr_b32 s37, s2, 1\ns_and_b32 {sPART}, s37, 3\ns_xor_b32 s37, s37, s2\ns_and_b32 s37, s37, 1\ns_lshr_b32 {sHEAD}, s2, 3\ns_lshl1_add_u32 {sHEAD}, {sHEAD}, s37")
    A(f"v_xor_b32 {vDMA[0]}, {vG}, {vN}\nv_lshlrev_b32 {vDMA[0]}, 4, {vDMA[0]}")
    A(f"s_cmp_lg_u32 {sWAVE}, 0\ns_cbranch_scc1 " + ("L_cdisp" if TOUCH else "L_consumer"))
    sK = ["s32", "s33", "s40", "s41"]; sV = ["s46", "s47", "s52", "s53"]
    mK = ["s54", "s55", "s56", "s57"]; mV = ["s12", "s13", "s14", "s15"]; sP, sN, sACC, sMODE = "s58", "s34", "s35", "s36"
    A(f"v_lshl_add_u32 {vDMA[0]}, {vG}, 8, {vDMA[0]}")
    A(f"s_lshl_b32 {sK[0]}, {sPART}, 14\ns_mov_b32 s22, {LIMIT}\ns_mov_b32 s23, 0x20000\ns_lshl_b32 s37, {sHEAD}, 21\ns_mov_b32 {sP}, -2\ns_mov_b32 {sMODE}, 1")
    A(f"v_xor_b32 {vDMA[1]}, 64, {vDMA[0]}\nv_xor_b32 {vDMA[2]}, 0x80, {vDMA[0]}\nv_xor_b32 {vDMA[3]}, 64, {vDMA[2]}")
    A(f"s_mov_b32 {mK[0]}, 0\ns_movk_i32 {mK[1]}, 0x1000\ns_movk_i32 {mK[2]}, 0x2000\ns_movk_i32 {mK[3]}, 0x3000")
    for t in range(1, 4): A(f"s_add_u32 {sK[t]}, {sK[0]}, {mK[t]}")
    A("s_waitcnt lgkmcnt(0)")
    A("s_add_u32 s20, s6, s37\ns_addc_u32 s21, s7, 0")
    lab = [0]
    def group(kind):
        if XG: A(f"s_cmp_lg_u32 {sMODE}, 0")
        for n in range(16):
            pc, t = n // 4, n % 4
            A(f"s_mov_b32 m0, {(mK if kind == 'K' else mV)[t]}")
            if XG:
                A(f"s_waitcnt vmcnt({loose[n % len(loose)] - 1})\ns_cbranch_scc1 L_w{lab[0]}\ns_waitcnt vmcnt({strict[n % len(strict)] - 1})\nL_w{lab[0]}:"); lab[0] += 1
            else:
                A(f"s_waitcnt vmcnt({wins[n % len(wins)] - 1})")
            if kind == "K": A(f"buffer_load_dwordx4 {vDMA[pc]}, {KSRD}, {sK[t]} offen offset:{pc*1024} {FLAGS} lds")
            else: A(f"buffer_load_dwordx4 {vVoff}, {VSRD}, {sV[t]} offen offset:{pc*1024} {FLAGS} lds")
    def rot(m, lo, hi):
        A(f"s_add_u32 {m[0]}, {m[0]}, 0x4000\ns_cmp_eq_u32 {m[0]}, {hi}\ns_cselect_b32 {m[0]}, {lo}, {m[0]}")
        for t in range(1, 4): A(f"s_add_u32 {m[t]}, {m[0]}, {t*4096}")
    A("L_lloop:")
    group("K")
    for t in range(4): A(f"s_add_u32 {sK[t]}, {sK[t]}, {SINC}")
    rot(mK, 0, VBASE)
    A(f"s_cmp_lt_i32 {sP}, 0\ns_cbranch_scc1 L_lstart")
    A("L_lv:")
    group("V")
    for t in range(4): A(f"s_add_u32 {sV[t]}, {sV[t]}, {SINC}")
    rot(mV, VBASE, 2*VBASE)
    A(f"s_cmp_lt_i32 {sP}, 30\ns_cbranch_scc1 L_lbar")
    A("L_lw16:\ns_waitcnt vmcnt(16)\nL_lbar:\ns_barrier")
    A(f"s_add_u32 {sP}, {sP}, 1")
    if XG: A(f"s_add_u32 {sACC}, {sACC}, {sN}\ns_lshr_b32 {sMODE}, {sACC}, 4\ns_and_b32 {sACC}, {sACC}, 15")
    if MST:
        for pp, r in ((4, 66), (12, 64), (20, 70), (26, 72)):
            A(f"s_cmp_lg_u32 {sP}, {pp}\ns_cbranch_scc1 L_nost_{pp}\ns_memrealtime s[{r}:{r+1}]\nL_nost_{pp}:")
    A(f"s_cmp_lt_i32 {sP}, 30\ns_cbranch_scc1 L_lloop\ns_cmp_lt_i32 {sP}, 32\ns_cbranch_scc1 L_lv")
    A("s_waitcnt vmcnt(0)")
    stamp(4)
    A("s_barrier")
    if MST:
        A(f"s_getreg_b32 {sP}, hwreg(HW_REG_XCC_ID)\ns_and_b32 {sP}, {sP}, 15\ns_add_u32 {sP}, {sP}, 1\ns_add_u32 s62, s60, {sP}\ns_addc_u32 s63, s61, 0\ns_branch L_fin")
    else:
        A("s_endpgm")
    A(f"L_lstart:\ns_cmp_eq_u32 {sP}, -1\ns_cbranch_scc1 L_lw16")
    A(f"s_mov_b32 s28, s10\ns_mov_b32 s29, s11\ns_movk_i32 s30, 2048\ns_mov_b32 s31, 0x20000\ns_mov_b32 m0, {OMLDS}\nv_lshlrev_b32 {vVoff}, 4, v0")
    A(f"buffer_load_dwordx4 {vVoff}, {OSRD}, 0 offen lds\nbuffer_load_dwordx4 {vVoff}, {OSRD}, 0 offen offset:1024 lds")
    A(f"s_lshl_b32 s38, {sHEAD}, 8\ns_add_u32 s48, s4, s38\ns_addc_u32 s49, s5, 0\ns_movk_i32 s50, 256\ns_mov_b32 s51, 0x20000\ns_mov_b32 m0, {OMLDS+2048}\ns_mov_b32 {sP}, -1")
    A(f"buffer_load_dwordx4 {vVoff}, s[48:51], 0 offen lds")
    if PRIO: A(f"s_setprio {PRIO}")
    A(f"s_add_u32 s24, s8, s37\ns_addc_u32 s25, s9, 0\ns_mov_b32 s26, {LIMIT}\ns_mov_b32 s27, 0x20000")
    for t in range(4): A(f"s_sub_u32 {sV[t]}, {sK[t]}, {SINC}\ns_mov_b32 {mV[t]}, {VBASE + t*4096}")
    if XG:
        lat = [0.30, -0.55, 0.20, -0.45, 0.62, -0.16, 0.37, -0.09]
        base = sum(strict) / len(strict); span = sum(loose) / len(loose) - base
        n = [int(round((16 * (XG / 10.0) * x * 20 / 34 + XOFF + 16 * (20 - base)) / span)) for x in lat]
        assert all(0 <= x <= 15 for x in n), n
        tab = sum(x << (4*i) for i, x in enumerate(n))
        A(f"s_getreg_b32 s38, hwreg(HW_REG_XCC_ID, 0, 3)\ns_lshl_b32 s38, s38, 2\ns_mov_b32 s39, {tab:#x}\ns_lshr_b32 s39, s39, s38\ns_and_b32 {sN}, s39, 15\ns_mov_b32 {sACC}, 8")
    A("s_branch L_lloop")
    if TOUCH:
        A("; consumers enter through pads spread over the main-loop code so that it is fetched while they are idle")
        A(f"L_cdisp:\ns_cmp_eq_u32 {sWAVE}, 1\ns_cbranch_scc1 L_pad0\ns_cmp_eq_u32 {sWAVE}, 2\ns_cbranch_scc1 L_pad1\ns_cmp_eq_u32 {sWAVE}, 3\ns_cbranch_scc1 L_pad2\ns_branch L_pad3")

    sSC = "s[34:35]"; sMASK = "s36"; sL2E = "s[38:39]"; sISM = "s[42:43]"; sEPS = "s[44:45]"; sFLG = "s[54:55]"
    sCW, sKS, sVS, sIT, sPOLL, sSETF, sRANK = "s59", "s32", "s33", "s41", "s52", "s53", "s47"
    vRD0 = "v5"; vKA = ["v6", "v7", "v8", "v19"]; vMA = ["v10", "v11"]; vM = ["v12", "v13", "v14", "v15"]; vDEN = "v16"; vPQ = ["v17", "v18"]
    AREG, PA, PB, GA, GB, ACC, T, KX, VX, OM = 20, 24, 28, 32, 36, 40, 56, 72, 88, 104
    vVA, vV0, vF, vFA = "v122", "v123", "v124", "v125"
    NV = 128
    A("L_consumer:")
    A("s_load_dwordx4 s[12:15], s[0:1], 32\ns_load_dwordx2 s[16:17], s[0:1], 48")
    A(f"s_sub_u32 {sCW}, {sWAVE}, 1\ns_lshl_b32 s37, {sCW}, 12")
    A(f"v_lshl_add_u32 {vRD0}, {vN}, 8, {vDMA[0]}\nv_add_u32 {vRD0}, s37, {vRD0}")
    A(f"v_lshlrev_b32 {vVoff}, 4, v0\nv_add_u32 {vV0}, s37, {vVoff}\nv_add_u32 {vFA}, 1024, {vVoff}")
    A(f"v_and_b32 {v(T)}, 7, v0\nv_lshlrev_b32 {v(T)}, 8, {v(T)}\nv_lshlrev_b32 {v(T+1)}, 4, {vG}\nv_add_u32 {v(T)}, {v(T)}, {v(T+1)}")
    A(f"v_add_u32 {v(T+8)}, {OMLDS}, {v(T)}\nv_add_u32 {v(T+9)}, {OMLDS+2048}, {v(T+1)}")
    sc = f2u(128.0 ** -0.25); l2e = f2u(1.4426950408889634); ism = f2u(8.0 ** -0.5); eps = f2u(1e-6)
    A(f"s_mov_b32 s34, {sc:#x}\ns_mov_b32 s35, s34\ns_mov_b32 {sMASK}, 0xffff0000\ns_mov_b32 s38, {l2e:#x}\ns_mov_b32 s39, s38")
    A(f"s_mov_b32 s42, {ism:#x}\ns_mov_b32 s43, s42\ns_mov_b32 s44, {eps:#x}\ns_mov_b32 s45, s44")
    A(f"s_mov_b32 {sKS}, 0\ns_mov_b32 {sVS}, {VBASE+16384}\ns_mov_b32 {sIT}, 0")
    A(f"s_lshl_b32 s37, {sHEAD}, 13\ns_lshl_b32 s46, {sHEAD}, 2")
    A(f"s_cmp_eq_u32 {sCW}, 0\ns_cselect_b32 {sPOLL}, 15, -1\ns_or_b32 s47, {sPART}, {sCW}\ns_cmp_eq_u32 s47, 0\ns_cselect_b32 {sSETF}, 2, -1")
    A(f"v_mov_b32 {vF}, 0\nv_mov_b32 {v(VX)}, -1\nv_mov_b32 {v(VX+1)}, -1\nv_mov_b32 {v(VX+2)}, -1\nv_mov_b32 {v(VX+3)}, -1")
    A("s_waitcnt lgkmcnt(0)")
    A("s_add_u32 s16, s16, s37\ns_addc_u32 s17, s17, 0\ns_add_u32 s54, s14, s46\ns_addc_u32 s55, s15, 0")
    A(f"s_cmp_lg_u32 s47, 0\ns_cbranch_scc1 L_noclr")
    for w in range(4): A(f"global_store_dwordx4 {vFA}, {vr(VX,4)}, s[16:17] offset:{w*1024} sc1")
    A(f"s_mov_b64 exec, 1\nglobal_store_dword {vF}, {vF}, s[16:17] sc1\ns_mov_b64 exec, -1")
    A("L_noclr:")
    if MST: A("s_mov_b64 s[70:71], 0\ns_mov_b64 s[72:73], 0\ns_mov_b64 s[62:63], 0\ns_mov_b64 s[66:67], 0")
    A(f"v_and_b32 {v(T+2)}, 1, v0\nv_lshlrev_b32 {v(T+2)}, 4, {v(T+2)}\nv_mov_b32 {v(T+3)}, 0xffff\nv_lshlrev_b32 {v(T+2)}, {v(T+2)}, {v(T+3)}\nv_and_b32 {v(T+3)}, 2, v0\nv_cmp_ne_u32 vcc, 0, {v(T+3)}\ns_nop 1")
    A(f"v_cndmask_b32_e64 {vMA[0]}, {v(T+2)}, 0, vcc\nv_cndmask_b32_e64 {vMA[1]}, 0, {v(T+2)}, vcc")
    A(f"v_lshlrev_b32 {v(T+2)}, 2, {vG}\nv_sub_u32 {v(T+2)}, {vN}, {v(T+2)}")
    for r in range(4):
        A(f"v_cmp_eq_u32 vcc, {r}, {v(T+2)}\ns_nop 1\nv_cndmask_b32_e64 {vM[r]}, 0, -1, vcc")
    A(f"v_mov_b32 {vDEN}, 0")
    for i in range(16): A(f"v_mov_b32 {v(ACC+i)}, 0")

    def scale_a(x):
        for i in range(4):
            A(f"v_lshlrev_b32 {v(T+2*i)}, 16, {v(x+i)}\nv_and_b32 {v(T+2*i+1)}, {sMASK}, {v(x+i)}")
    def scale_b(x):
        for i in range(4): A(f"v_pk_mul_f32 {vr(T+2*i,2)}, {vr(T+2*i,2)}, {sSC}")
        for i in range(4): A(f"v_cvt_pk_bf16_f32 {v(x+i)}, {v(T+2*i)}, {v(T+2*i+1)}")
    def mf(x, P, G, c):
        A(f"v_mfma_f32_16x16x32_bf16 {vr(P,4)}, {vr(OM+c*4,4)}, {vr(x+c*4,4)}, {'0' if c == 0 else vr(P,4)}")
        A(f"v_mfma_f32_16x16x32_bf16 {vr(G,4)}, {vr(x+c*4,4)}, {vr(x+c*4,4)}, {'0' if c == 0 else vr(G,4)}")
    def ktile(x, P, G, first_wait):
        for c in range(4):
            A(f"s_waitcnt lgkmcnt({first_wait-c})")
            scale_a(x + c*4)
            if c > 0: mf(x, P, G, c-1)
            scale_b(x + c*4)
        A("s_nop 1"); mf(x, P, G, 3)
    def vmf(sl, b, a0):
        r = VX + b*4
        A(f"v_mfma_f32_4x4x4_16b_bf16 {vr(a0,4)}, {vr(AREG+2*sl,2)}, {vr(r,2)}, {vr(a0,4)} cbsz:2 abid:{b}")
        A(f"v_mfma_f32_4x4x4_16b_bf16 {vr(a0+4,4)}, {vr(AREG+2*sl,2)}, {vr(r+2,2)}, {vr(a0+4,4)} cbsz:2 abid:{b}")
    def vtile(sl):
        for b in range(4): vmf(sl, b, ACC + (b & 1)*8)
    def unp4():
        A(f"v_lshlrev_b32 {v(T)}, 16, {v(T+4)}\nv_and_b32 {v(T+1)}, {sMASK}, {v(T+4)}\nv_lshlrev_b32 {v(T+2)}, 16, {v(T+5)}\nv_and_b32 {v(T+3)}, {sMASK}, {v(T+5)}")
    def rnd4():
        A(f"v_cvt_pk_bf16_f32 {v(T+4)}, {v(T)}, {v(T+1)}\nv_cvt_pk_bf16_f32 {v(T+5)}, {v(T+2)}, {v(T+3)}")
        unp4()
    def phi(P, Sq, d0, d1):
        A(f"v_cvt_pk_bf16_f32 {v(T+6)}, {Sq}, {Sq}")
        A(f"v_cvt_pk_bf16_f32 {v(T+4)}, {v(P)}, {v(P+1)}\nv_cvt_pk_bf16_f32 {v(T+5)}, {v(P+2)}, {v(P+3)}")
        A(f"v_and_b32 {v(T+6)}, {sMASK}, {v(T+6)}")
        unp4()
        for i in range(4): A(f"v_fma_f32 {v(T+i)}, {v(T+6)}, -0.5, {v(T+i)}")
        rnd4()
        A(f"v_pk_mul_f32 {vr(T,2)}, {vr(T,2)}, {sL2E}\nv_pk_mul_f32 {vr(T+2,2)}, {vr(T+2,2)}, {sL2E}")
        for i in range(4): A(f"v_exp_f32 {v(T+i)}, {v(T+i)}")
        rnd4()
        A(f"v_pk_mul_f32 {vr(T,2)}, {vr(T,2)}, {sISM}\nv_pk_mul_f32 {vr(T+2,2)}, {vr(T+2,2)}, {sISM}")
        rnd4()
        A(f"v_pk_add_f32 {vr(T,2)}, {vr(T,2)}, {sEPS}\nv_pk_add_f32 {vr(T+2,2)}, {vr(T+2,2)}, {sEPS}")
        A(f"v_cvt_pk_bf16_f32 {d0}, {v(T)}, {v(T+1)}\nv_cvt_pk_bf16_f32 {d1}, {v(T+2)}, {v(T+3)}")
    def elementwise():
        a, b = v(T+8), v(T+9)
        A(f"v_and_b32 {a}, {v(GA)}, {vM[0]}\nv_and_b32 {b}, {v(GB)}, {vM[0]}")
        for r in range(1, 4):
            A(f"v_and_or_b32 {a}, {v(GA+r)}, {vM[r]}, {a}\nv_and_or_b32 {b}, {v(GB+r)}, {vM[r]}, {b}")
        for r in range(2): A(f"v_permlane32_swap_b32 {v(PA+r)}, {v(PB+r)}")
        A(f"v_permlane32_swap_b32 {a}, {b}\nv_or_b32 {a}, {a}, {b}\nv_mov_b32 {b}, {a}")
        for r in range(2, 4): A(f"v_permlane32_swap_b32 {v(PA+r)}, {v(PB+r)}")
        A(f"v_permlane16_swap_b32 {a}, {b}\nv_or_b32 {a}, {a}, {b}")
        phi(PA, a, v(T+10), v(T+11))
        w, t, ua, ub = v(T+12), v(T+13), v(T+14), v(T+15)
        A(f"v_dot2_f32_bf16 {w}, {v(T+10)}, {vPQ[0]}, 0\nv_dot2_f32_bf16 {w}, {v(T+11)}, {vPQ[1]}, {w}")
        A(f"s_nop 2\nv_mov_b32 {t}, {w}\ns_nop 1\nv_permlane16_swap_b32 {w}, {t}\nv_add_f32 {w}, {w}, {t}")
        A(f"v_cvt_pk_bf16_f32 {w}, {w}, {w}\nv_mov_b32 {t}, {w}\nv_and_b32 {ua}, {sMASK}, {w}\nv_add_f32 {vDEN}, {vDEN}, {ua}")
        A(f"v_permlane32_swap_b32 {w}, {t}\ns_nop 1")
        for g in range(4):
            A(f"v_mov_b32_dpp {ua}, {w} quad_perm:[{g},{g},{g},{g}] row_mask:{1<<g:#x} bank_mask:0xf")
            A(f"v_mov_b32_dpp {ub}, {t} quad_perm:[{g},{g},{g},{g}] row_mask:{1<<g:#x} bank_mask:0xf")
        A(f"v_and_b32 {v(AREG)}, {ua}, {vMA[0]}\nv_and_b32 {v(AREG+1)}, {ua}, {vMA[1]}\nv_and_b32 {v(AREG+2)}, {ub}, {vMA[0]}\nv_and_b32 {v(AREG+3)}, {ub}, {vMA[1]}")
    def addrs(k=True):
        if k:
            A(f"v_add_u32 {vKA[0]}, {sKS}, {vRD0}\nv_xor_b32 {vKA[1]}, 64, {vKA[0]}\nv_xor_b32 {vKA[2]}, 0x80, {vKA[0]}\nv_xor_b32 {vKA[3]}, 64, {vKA[2]}")
            A(f"s_add_u32 {sKS}, {sKS}, 16384\ns_cmp_eq_u32 {sKS}, {VBASE}\ns_cselect_b32 {sKS}, 0, {sKS}")
        A(f"v_add_u32 {vVA}, {sVS}, {vV0}")
        A(f"s_add_u32 {sVS}, {sVS}, 16384\ns_cmp_eq_u32 {sVS}, {2*VBASE}\ns_cselect_b32 {sVS}, {VBASE}, {sVS}")
    def vreads():
        for b in range(4): A(f"ds_read_b128 {vr(VX+b*4,4)}, {vVA} offset:{b*1024}")
    def pad(k, over=True):
        if TOUCH: A((f"s_branch L_skip{k}\n" if over else "") + f"L_pad{k}:\ns_branch L_consumer\n" + (f"L_skip{k}:" if over else ""))

    addrs()
    A("s_barrier")
    for c in range(4): A(f"ds_read_b128 {vr(OM+c*4,4)}, {v(T+8)} offset:{c*64}")
    for c in range(4): A(f"ds_read_b128 {vr(KX+c*4,4)}, {v(T+9)} offset:{c*64}")
    ktile(KX, PA, GA, 3)
    A("s_nop 7")
    phi(PA, v(GA), vPQ[0], vPQ[1])
    stamp(2)
    A("s_branch L_entry")
    A(f"L_setflag:\ns_waitcnt vmcnt(0)\nv_mov_b32 {v(T)}, 1\ns_mov_b64 exec, 1\nglobal_store_dword {vF}, {v(T)}, {sFLG} sc1\ns_mov_b64 exec, -1\ns_branch L_flagset")
    A(f"L_poll:\ns_mov_b64 exec, 1\nglobal_load_dword {vF}, {vF}, {sFLG} sc1\ns_mov_b64 exec, -1\ns_branch L_polled")
    A(".p2align 12")
    pad(0, False)
    A("L_loop:")
    for sl in range(2):
        addrs()
        if sl == 1: pad(1)
        A("s_barrier")
        if sl == 0: A("L_entry:")
        for c in range(4): A(f"ds_read_b128 {vr(KX+c*4,4)}, {vKA[c]}")
        vreads()
        ktile(KX, PA if sl == 0 else PB, GA if sl == 0 else GB, 7)
        A(f"s_cmp_eq_u32 {sIT}, 0\ns_waitcnt lgkmcnt(0)\ns_cbranch_scc1 L_novt{sl}")
        vtile(sl)
        A(f"L_novt{sl}:")
    pad(2)
    A("s_nop 7")
    elementwise()
    A(f"s_cmp_eq_u32 {sIT}, {sSETF}\ns_cbranch_scc1 L_setflag\nL_flagset:")
    A(f"s_cmp_eq_u32 {sIT}, {sPOLL}\ns_cbranch_scc1 L_poll\nL_polled:")
    A(f"s_add_u32 {sIT}, {sIT}, 1\ns_cmp_lt_u32 {sIT}, 16\ns_cbranch_scc1 L_loop")
    for sh in (8, 4, 2, 1):
        A(f"v_add_f32_dpp {vDEN}, {vDEN}, {vDEN} row_ror:{sh} row_mask:0xf bank_mask:0xf\ns_nop 1")
    A(f"s_lshl_b32 s37, {sCW}, 4\ns_add_u32 s37, s37, {DENLDS}\nv_lshl_add_u32 {v(T)}, {vG}, 2, s37\nds_write_b32 {v(T)}, {vDEN}")
    addrs(False)
    A(f"v_mov_b32 {v(T+14)}, 0\nv_mov_b32 {v(T+15)}, 1\ns_mov_b32 {sRANK}, 0")
    A(f"s_cmp_lg_u32 {sCW}, 0\ns_cbranch_scc1 L_flagok\ns_waitcnt vmcnt(0)")
    A(f"L_flagchk:\nv_readfirstlane_b32 s37, {vF}\ns_nop 3\ns_cmp_lg_u32 s37, 0\ns_cbranch_scc1 L_flagok")
    A(f"global_load_dword {vF}, {v(T+14)}, {sFLG} sc1\ns_waitcnt vmcnt(0)\ns_branch L_flagchk")
    pad(3, False)
    A("L_flagok:\ns_waitcnt lgkmcnt(0)\ns_barrier")
    def rank(): A(f"s_mov_b64 exec, 1\nglobal_atomic_add {vF}, {v(T+14)}, {v(T+15)}, s[16:17] sc0\ns_mov_b64 exec, -1")
    vreads()
    A(f"s_cmp_lg_u32 {sCW}, 0\ns_cbranch_scc1 L_norank")
    if EARLYRANK: rank()
    A(f"v_mov_b32 {v(T)}, {DENLDS}")
    for w in range(4): A(f"ds_read_b128 {vr(KX+4*w,4)}, {v(T)} offset:{w*16}")
    A("s_waitcnt lgkmcnt(0)")
    A("v_pk_add_f32 v[72:73], v[72:73], v[74:75]\nv_pk_add_f32 v[76:77], v[76:77], v[78:79]\nv_pk_add_f32 v[80:81], v[80:81], v[82:83]\nv_pk_add_f32 v[84:85], v[84:85], v[86:87]")
    A("v_pk_add_f32 v[72:73], v[72:73], v[76:77]\nv_pk_add_f32 v[80:81], v[80:81], v[84:85]\nv_pk_add_f32 v[72:73], v[72:73], v[80:81]")
    A("v_add_f32 v74, v72, v73\nv_mul_f32 v74, 0.5, v74\nv_min_u32 v74, -2, v74\nv_mov_b32 v75, 0")
    A(f"s_lshl_b32 s37, {sHEAD}, 8\ns_add_u32 s12, s12, s37\ns_addc_u32 s13, s13, 0")
    A(f"s_lshl_b32 s37, {sPART}, 10\nv_add_u32 {v(T+2)}, s37, {vFA}\nv_lshlrev_b32 {v(T+3)}, 2, v0\nv_lshlrev_b32 {v(T+4)}, 3, v0")
    A("L_norank:\ns_waitcnt lgkmcnt(0)")
    vtile(0)
    addrs(False)
    A(f"s_lshl_b32 s37, {sCW}, 10\nv_lshlrev_b32 {v(T)}, 5, {vN}\nv_lshl_add_u32 {v(T)}, {vG}, 3, {v(T)}\nv_add_u32 {v(T)}, s37, {v(T)}")
    for r in range(8): A(f"v_add_f32 {v(ACC+r)}, {v(ACC+r)}, {v(ACC+8+r)}")
    if EARLYRANK:
        A(f"s_cmp_lg_u32 {sCW}, 0\ns_cbranch_scc1 L_nork2\ns_waitcnt vmcnt(0)\nv_readfirstlane_b32 {sRANK}, {vF}\nL_nork2:")
    A("s_barrier")
    vreads()
    R = OM
    def slotloads():
        for w in range(4): A(f"global_load_dwordx4 {vr(R+4*w,4)}, {vFA}, s[16:17] offset:{w*1024} sc1")
    if EARLYRANK:
        A(f"s_cmp_lg_u32 {sRANK}, 3\ns_cbranch_scc1 L_nopre"); slotloads(); A("L_nopre:")
    else:
        A(f"s_cmp_lg_u32 {sCW}, 0\ns_cbranch_scc1 L_nopre"); rank(); slotloads(); A("L_nopre:")
    for b in range(4):
        A(f"s_waitcnt lgkmcnt({3-b})"); vmf(1, b, ACC)
    stamp(4)
    A("s_nop 4")
    for r in range(4): A(f"v_permlane32_swap_b32 {v(ACC+r)}, {v(ACC+4+r)}")
    for r in range(4): A(f"v_add_f32 {v(ACC+r)}, {v(ACC+r)}, {v(ACC+4+r)}")
    A("s_nop 0")
    for r in range(2): A(f"v_permlane16_swap_b32 {v(ACC+r)}, {v(ACC+2+r)}")
    for r in range(2): A(f"v_add_f32 {v(ACC+r)}, {v(ACC+r)}, {v(ACC+2+r)}")
    A(f"ds_write_b64 {v(T)}, {vr(ACC,2)}\ns_waitcnt lgkmcnt(0)\ns_barrier")
    stamp(5)
    A(f"s_cmp_lg_u32 {sCW}, 0\ns_cbranch_scc1 L_fin")
    for w in range(4): A(f"ds_read_b64 {vr(76+2*w,2)}, {v(T+4)} offset:{w*1024}")
    if not EARLYRANK: A(f"s_waitcnt vmcnt(4)\nv_readfirstlane_b32 {sRANK}, {vF}")
    A("s_waitcnt lgkmcnt(0)")
    A("v_pk_add_f32 v[76:77], v[76:77], v[78:79]\nv_pk_add_f32 v[80:81], v[80:81], v[82:83]\nv_pk_add_f32 v[72:73], v[76:77], v[80:81]")
    A("v_min_u32 v72, -2, v72\nv_min_u32 v73, -2, v73")
    A(f"s_cmp_eq_u32 {sRANK}, 3\ns_cbranch_scc1 L_last")
    A(f"global_store_dwordx4 {v(T+2)}, v[72:75], s[16:17] sc1\ns_branch L_fin")
    A("L_reload:"); slotloads()
    A("L_last:")
    stamp(6)
    A("s_waitcnt vmcnt(0)")
    for k in range(4):
        A(f"s_cmp_lg_u32 {sPART}, {k}\ns_cbranch_scc1 L_np{k}\nv_mov_b32 {v(R+4*k)}, v72\nv_mov_b32 {v(R+4*k+1)}, v73\nv_mov_b32 {v(R+4*k+2)}, v74\nL_np{k}:")
    A(f"v_max3_u32 v76, {v(R)}, {v(R+1)}, {v(R+2)}\nv_max3_u32 v77, {v(R+4)}, {v(R+5)}, {v(R+6)}\nv_max3_u32 v78, {v(R+8)}, {v(R+9)}, {v(R+10)}\nv_max3_u32 v79, {v(R+12)}, {v(R+13)}, {v(R+14)}")
    A(f"v_max3_u32 v76, v76, v77, v78\nv_max_u32 v76, v76, v79\nv_cmp_eq_u32 vcc, -1, v76")
    A(f"v_add_f32 v80, {v(R+2)}, {v(R+6)}\nv_add_f32 v82, {v(R+10)}, {v(R+14)}\ns_cbranch_vccnz L_reload")
    A(f"v_add_f32 v80, v80, v82\nv_add_f32 v80, s44, v80\nv_rcp_f32 v80, v80")
    A(f"v_pk_add_f32 {vr(R,2)}, {vr(R,2)}, {vr(R+4,2)}\nv_pk_add_f32 {vr(R+8,2)}, {vr(R+8,2)}, {vr(R+12,2)}\nv_pk_add_f32 v[72:73], {vr(R,2)}, {vr(R+8,2)}")
    A("v_mul_f32 v72, v72, v80\nv_mul_f32 v73, v73, v80\nv_cvt_pk_bf16_f32 v72, v72, v73")
    A(f"global_store_dword {v(T+3)}, v72, s[12:13]")
    A("L_fin:")
    if MST:
        A("s_waitcnt vmcnt(0)\ns_memrealtime s[74:75]\ns_load_dwordx2 s[16:17], s[0:1], 48")
        A(f"s_mul_i32 s19, s2, 5\ns_add_u32 s19, s19, {sWAVE}\ns_lshl_b32 s19, s19, 6")
        A("s_waitcnt lgkmcnt(0)\ns_add_u32 s16, s16, 0x10000000\ns_addc_u32 s17, s17, 0\nv_mov_b32 v1, s19\ns_mov_b64 exec, 1")
        for i in range(4):
            A(f"v_mov_b32 v4, s{60+4*i}\nv_mov_b32 v5, s{61+4*i}\nv_mov_b32 v6, s{62+4*i}\nv_mov_b32 v7, s{63+4*i}\nglobal_store_dwordx4 v1, v[4:7], s[16:17] offset:{16*i}\ns_nop 1")
    A("L_end:\ns_endpgm")
    A(f""".section .rodata,"a"
.p2align 6
.amdhsa_kernel standalone__linear_kernel_rfa__decode_kernel
  .amdhsa_next_free_vgpr {NV}
  .amdhsa_next_free_sgpr 80
  .amdhsa_accum_offset {NV}
  .amdhsa_group_segment_fixed_size 0
  .amdhsa_kernarg_size 56
  .amdhsa_user_sgpr_count 2
  .amdhsa_user_sgpr_kernarg_segment_ptr 1
  .amdhsa_system_sgpr_workgroup_id_x 1
.end_amdhsa_kernel""")
    return "\n".join(L) + "\n"
if __name__ == "__main__":
    kw = {}
    for x in sys.argv[2:]:
        k, val = x.split("=")
        kw[k] = int(val) if (val.lstrip("-").isdigit() and k not in ("WIN", "LOOSE", "STRICT")) else val.replace("+", " ")
    open(sys.argv[1], "w").write(gen(**kw))
```

```python
import sys, struct
def f2u(x): return struct.unpack("<I", struct.pack("<f", x))[0]
HEADER = """; Kernarg layout for this problem (56 bytes, ptrs only, base s[0:1]):
"""
def gen(FLAGS="nt", MST=0, WIN="20", XG=0, XOFF=2, LOOSE="21,21,21,20", STRICT="20,20,19,20", TOUCH=1, PRIO=3, EARLYRANK=0, HAND=1, CLRIT=-1, SETIT=2):
    L = []; A = L.append
    NWG = 256; LIMIT = 0x200000; SINC = 0x10000
    VBASE = 49152; DENLDS = 98304; OMLDS = 98368
    wins = [int(c) for c in str(WIN).split(",")]
    loose = [int(c) for c in LOOSE.split(",")]; strict = [int(c) for c in STRICT.split(",")]
    A(HEADER + f"; @launch grid=({NWG},1,1) block=(320,1,1) lds={OMLDS + 3072}")
    A('.amdgcn_target "amdgcn-amd-amdhsa--gfx950"\n.text\n.globl standalone__linear_kernel_rfa__decode_kernel\n.p2align 12\n.p2align 8\n.type standalone__linear_kernel_rfa__decode_kernel,@function\nstandalone__linear_kernel_rfa__decode_kernel:')
    sWAVE, sHEAD, sPART = "s3", "s18", "s19"
    KSRD, VSRD, OSRD = "s[20:23]", "s[24:27]", "s[28:31]"
    vDMA = ["v1", "v2", "v3", "v4"]; vVoff = "v9"
    vN, vG = "v120", "v121"
    def v(i): return f"v{i}"
    def vr(i, n): return f"v[{i}:{i+n-1}]"
    def stamp(k):
        if MST: A(f"s_memrealtime s[{60+2*k}:{61+2*k}]")

    A(f"s_cmp_ge_u32 s2, {NWG}\ns_cbranch_scc1 L_end")
    stamp(0)
    A("s_load_dwordx8 s[4:11], s[0:1], 0")
    A(f"v_lshrrev_b32 {vG}, 6, v0\nv_and_b32 v0, 63, v0")
    A(f"v_and_b32 {vN}, 15, v0\nv_readfirstlane_b32 {sWAVE}, {vG}\nv_lshrrev_b32 {vG}, 4, v0")
    A(f"s_lshr_b32 s37, s2, 1\ns_and_b32 {sPART}, s37, 3\ns_xor_b32 s37, s37, s2\ns_and_b32 s37, s37, 1\ns_lshr_b32 {sHEAD}, s2, 3\ns_lshl1_add_u32 {sHEAD}, {sHEAD}, s37")
    A(f"v_xor_b32 {vDMA[0]}, {vG}, {vN}\nv_lshlrev_b32 {vDMA[0]}, 4, {vDMA[0]}")
    A(f"s_cmp_lg_u32 {sWAVE}, 0\ns_cbranch_scc1 " + ("L_cdisp" if TOUCH else "L_consumer"))
    sK = ["s32", "s33", "s40", "s41"]; sV = ["s46", "s47", "s52", "s53"]
    mK = ["s54", "s55", "s56", "s57"]; mV = ["s12", "s13", "s14", "s15"]; sP, sN, sACC, sMODE = "s58", "s34", "s35", "s36"
    A(f"v_lshl_add_u32 {vDMA[0]}, {vG}, 8, {vDMA[0]}")
    A(f"s_lshl_b32 {sK[0]}, {sPART}, 14\ns_mov_b32 s22, {LIMIT}\ns_mov_b32 s23, 0x20000\ns_lshl_b32 s37, {sHEAD}, 21\ns_mov_b32 {sP}, -2\ns_mov_b32 {sMODE}, 1")
    A(f"v_xor_b32 {vDMA[1]}, 64, {vDMA[0]}\nv_xor_b32 {vDMA[2]}, 0x80, {vDMA[0]}\nv_xor_b32 {vDMA[3]}, 64, {vDMA[2]}")
    A(f"s_mov_b32 {mK[0]}, 0\ns_movk_i32 {mK[1]}, 0x1000\ns_movk_i32 {mK[2]}, 0x2000\ns_movk_i32 {mK[3]}, 0x3000")
    for t in range(1, 4): A(f"s_add_u32 {sK[t]}, {sK[0]}, {mK[t]}")
    A("s_waitcnt lgkmcnt(0)")
    A("s_add_u32 s20, s6, s37\ns_addc_u32 s21, s7, 0")
    lab = [0]
    def group(kind):
        if XG: A(f"s_cmp_lg_u32 {sMODE}, 0")
        for n in range(16):
            pc, t = n // 4, n % 4
            A(f"s_mov_b32 m0, {(mK if kind == 'K' else mV)[t]}")
            if XG:
                A(f"s_waitcnt vmcnt({loose[n % len(loose)] - 1})\ns_cbranch_scc1 L_w{lab[0]}\ns_waitcnt vmcnt({strict[n % len(strict)] - 1})\nL_w{lab[0]}:"); lab[0] += 1
            else:
                A(f"s_waitcnt vmcnt({wins[n % len(wins)] - 1})")
            if kind == "K": A(f"buffer_load_dwordx4 {vDMA[pc]}, {KSRD}, {sK[t]} offen offset:{pc*1024} {FLAGS} lds")
            else: A(f"buffer_load_dwordx4 {vVoff}, {VSRD}, {sV[t]} offen offset:{pc*1024} {FLAGS} lds")
    def rot(m, lo, hi):
        A(f"s_add_u32 {m[0]}, {m[0]}, 0x4000\ns_cmp_eq_u32 {m[0]}, {hi}\ns_cselect_b32 {m[0]}, {lo}, {m[0]}")
        for t in range(1, 4): A(f"s_add_u32 {m[t]}, {m[0]}, {t*4096}")
    A("L_lloop:")
    group("K")
    for t in range(4): A(f"s_add_u32 {sK[t]}, {sK[t]}, {SINC}")
    rot(mK, 0, VBASE)
    A(f"s_cmp_lt_i32 {sP}, 0\ns_cbranch_scc1 L_lstart")
    A("L_lv:")
    group("V")
    for t in range(4): A(f"s_add_u32 {sV[t]}, {sV[t]}, {SINC}")
    rot(mV, VBASE, 2*VBASE)
    A(f"s_cmp_lt_i32 {sP}, 30\ns_cbranch_scc1 L_lbar")
    A("L_lw16:\ns_waitcnt vmcnt(16)\nL_lbar:\ns_barrier")
    A(f"s_add_u32 {sP}, {sP}, 1")
    if XG: A(f"s_add_u32 {sACC}, {sACC}, {sN}\ns_lshr_b32 {sMODE}, {sACC}, 4\ns_and_b32 {sACC}, {sACC}, 15")
    if MST:
        for pp, r in ((4, 66), (12, 64), (20, 70), (26, 72)):
            A(f"s_cmp_lg_u32 {sP}, {pp}\ns_cbranch_scc1 L_nost_{pp}\ns_memrealtime s[{r}:{r+1}]\nL_nost_{pp}:")
    A(f"s_cmp_lt_i32 {sP}, 30\ns_cbranch_scc1 L_lloop\ns_cmp_lt_i32 {sP}, 32\ns_cbranch_scc1 L_lv")
    A("s_waitcnt vmcnt(0)")
    stamp(4)
    A("s_barrier")
    if MST:
        A(f"s_getreg_b32 {sP}, hwreg(HW_REG_XCC_ID)\ns_and_b32 {sP}, {sP}, 15\ns_add_u32 {sP}, {sP}, 1\ns_add_u32 s62, s60, {sP}\ns_addc_u32 s63, s61, 0\ns_branch L_fin")
    else:
        A("s_endpgm")
    A(f"L_lstart:\ns_cmp_eq_u32 {sP}, -1\ns_cbranch_scc1 L_lw16")
    A(f"s_mov_b32 s28, s10\ns_mov_b32 s29, s11\ns_movk_i32 s30, 2048\ns_mov_b32 s31, 0x20000\ns_mov_b32 m0, {OMLDS}\nv_lshlrev_b32 {vVoff}, 4, v0")
    A(f"buffer_load_dwordx4 {vVoff}, {OSRD}, 0 offen lds\nbuffer_load_dwordx4 {vVoff}, {OSRD}, 0 offen offset:1024 lds")
    A(f"s_lshl_b32 s38, {sHEAD}, 8\ns_add_u32 s48, s4, s38\ns_addc_u32 s49, s5, 0\ns_movk_i32 s50, 256\ns_mov_b32 s51, 0x20000\ns_mov_b32 m0, {OMLDS+2048}\ns_mov_b32 {sP}, -1")
    A(f"buffer_load_dwordx4 {vVoff}, s[48:51], 0 offen lds")
    if PRIO: A(f"s_setprio {PRIO}")
    A(f"s_add_u32 s24, s8, s37\ns_addc_u32 s25, s9, 0\ns_mov_b32 s26, {LIMIT}\ns_mov_b32 s27, 0x20000")
    for t in range(4): A(f"s_sub_u32 {sV[t]}, {sK[t]}, {SINC}\ns_mov_b32 {mV[t]}, {VBASE + t*4096}")
    if XG:
        lat = [0.30, -0.55, 0.20, -0.45, 0.62, -0.16, 0.37, -0.09]
        base = sum(strict) / len(strict); span = sum(loose) / len(loose) - base
        n = [int(round((16 * (XG / 10.0) * x * 20 / 34 + XOFF + 16 * (20 - base)) / span)) for x in lat]
        assert all(0 <= x <= 15 for x in n), n
        tab = sum(x << (4*i) for i, x in enumerate(n))
        A(f"s_getreg_b32 s38, hwreg(HW_REG_XCC_ID, 0, 3)\ns_lshl_b32 s38, s38, 2\ns_mov_b32 s39, {tab:#x}\ns_lshr_b32 s39, s39, s38\ns_and_b32 {sN}, s39, 15\ns_mov_b32 {sACC}, 8")
    A("s_branch L_lloop")
    if TOUCH:
        A("; consumers enter through pads spread over the main-loop code so that it is fetched while they are idle")
        A(f"L_cdisp:\ns_cmp_eq_u32 {sWAVE}, 1\ns_cbranch_scc1 L_pad0\ns_cmp_eq_u32 {sWAVE}, 2\ns_cbranch_scc1 L_pad1\ns_cmp_eq_u32 {sWAVE}, 3\ns_cbranch_scc1 L_pad2\ns_branch L_pad3")

    sSC = "s[34:35]"; sMASK = "s36"; sL2E = "s[38:39]"; sISM = "s[42:43]"; sEPS = "s[44:45]"; sFLG = "s[54:55]"
    sCW, sKS, sVS, sIT, sPOLL, sSETF, sRANK = "s59", "s32", "s33", "s41", "s52", "s53", "s47"
    vRD0 = "v5"; vKA = ["v6", "v7", "v8", "v19"]; vMA = ["v10", "v11"]; vM = ["v12", "v13", "v14", "v15"]; vDEN = "v16"; vPQ = ["v17", "v18"]
    AREG, PA, PB, GA, GB, ACC, T, KX, VX, OM = 20, 24, 28, 32, 36, 40, 56, 72, 88, 104
    vVA, vV0, vF, vFA = "v122", "v123", "v124", "v125"
    NV = 128
    A("L_consumer:")
    A("s_load_dwordx4 s[12:15], s[0:1], 32\ns_load_dwordx2 s[16:17], s[0:1], 48")
    A(f"s_sub_u32 {sCW}, {sWAVE}, 1\ns_lshl_b32 s37, {sCW}, 12")
    A(f"v_lshl_add_u32 {vRD0}, {vN}, 8, {vDMA[0]}\nv_add_u32 {vRD0}, s37, {vRD0}")
    A(f"v_lshlrev_b32 {vVoff}, 4, v0\nv_add_u32 {vV0}, s37, {vVoff}\nv_add_u32 {vFA}, 1024, {vVoff}")
    A(f"v_and_b32 {v(T)}, 7, v0\nv_lshlrev_b32 {v(T)}, 8, {v(T)}\nv_lshlrev_b32 {v(T+1)}, 4, {vG}\nv_add_u32 {v(T)}, {v(T)}, {v(T+1)}")
    A(f"v_add_u32 {v(T+8)}, {OMLDS}, {v(T)}\nv_add_u32 {v(T+9)}, {OMLDS+2048}, {v(T+1)}")
    sc = f2u(128.0 ** -0.25); l2e = f2u(1.4426950408889634); ism = f2u(8.0 ** -0.5); eps = f2u(1e-6)
    A(f"s_mov_b32 s34, {sc:#x}\ns_mov_b32 s35, s34\ns_mov_b32 {sMASK}, 0xffff0000\ns_mov_b32 s38, {l2e:#x}\ns_mov_b32 s39, s38")
    A(f"s_mov_b32 s42, {ism:#x}\ns_mov_b32 s43, s42\ns_mov_b32 s44, {eps:#x}\ns_mov_b32 s45, s44")
    A(f"s_mov_b32 {sKS}, 0\ns_mov_b32 {sVS}, {VBASE+16384}\ns_mov_b32 {sIT}, 0")
    A(f"s_lshl_b32 s37, {sHEAD}, 13\ns_lshl_b32 s46, {sHEAD}, 2")
    A(f"s_cmp_eq_u32 {sCW}, 0\ns_cselect_b32 {sPOLL}, 15, -1\ns_or_b32 s47, {sPART}, {sCW}\ns_cmp_eq_u32 s47, 0\ns_cselect_b32 {sSETF}, {SETIT}, -1")
    A(f"v_mov_b32 {vF}, 0\nv_mov_b32 {v(VX)}, -1\nv_mov_b32 {v(VX+1)}, -1\nv_mov_b32 {v(VX+2)}, -1\nv_mov_b32 {v(VX+3)}, -1")
    A("s_waitcnt lgkmcnt(0)")
    A("s_add_u32 s16, s16, s37\ns_addc_u32 s17, s17, 0\ns_add_u32 s54, s14, s46\ns_addc_u32 s55, s15, 0")
    def clear():
        for w in range(4): A(f"global_store_dwordx4 {vFA}, {vr(VX,4)}, s[16:17] offset:{w*1024} sc1")
        A(f"s_mov_b64 exec, 1\nglobal_store_dword {vF}, {vF}, s[16:17] sc1\ns_mov_b64 exec, -1")
    if HAND and CLRIT < 0:
        A("; first consumer of part 0 resets the head's hand-off block: rank counter = 0, four partial slots = sentinel")
        A(f"s_cmp_lg_u32 s47, 0\ns_cbranch_scc1 L_noclr")
        clear()
        A("L_noclr:")
    if HAND and CLRIT >= 0: A(f"s_cmp_eq_u32 s47, 0\ns_cselect_b32 s56, {CLRIT}, -1")
    if MST: A("s_mov_b64 s[70:71], 0\ns_mov_b64 s[72:73], 0\ns_mov_b64 s[62:63], 0\ns_mov_b64 s[66:67], 0")
    A(f"v_and_b32 {v(T+2)}, 1, v0\nv_lshlrev_b32 {v(T+2)}, 4, {v(T+2)}\nv_mov_b32 {v(T+3)}, 0xffff\nv_lshlrev_b32 {v(T+2)}, {v(T+2)}, {v(T+3)}\nv_and_b32 {v(T+3)}, 2, v0\nv_cmp_ne_u32 vcc, 0, {v(T+3)}\ns_nop 1")
    A(f"v_cndmask_b32_e64 {vMA[0]}, {v(T+2)}, 0, vcc\nv_cndmask_b32_e64 {vMA[1]}, 0, {v(T+2)}, vcc")
    A(f"v_lshlrev_b32 {v(T+2)}, 2, {vG}\nv_sub_u32 {v(T+2)}, {vN}, {v(T+2)}")
    for r in range(4):
        A(f"v_cmp_eq_u32 vcc, {r}, {v(T+2)}\ns_nop 1\nv_cndmask_b32_e64 {vM[r]}, 0, -1, vcc")
    A(f"v_mov_b32 {vDEN}, 0")
    for i in range(16): A(f"v_mov_b32 {v(ACC+i)}, 0")

    def scale_a(x):
        for i in range(4):
            A(f"v_lshlrev_b32 {v(T+2*i)}, 16, {v(x+i)}\nv_and_b32 {v(T+2*i+1)}, {sMASK}, {v(x+i)}")
    def scale_b(x):
        for i in range(4): A(f"v_pk_mul_f32 {vr(T+2*i,2)}, {vr(T+2*i,2)}, {sSC}")
        for i in range(4): A(f"v_cvt_pk_bf16_f32 {v(x+i)}, {v(T+2*i)}, {v(T+2*i+1)}")
    def mf(x, P, G, c):
        A(f"v_mfma_f32_16x16x32_bf16 {vr(P,4)}, {vr(OM+c*4,4)}, {vr(x+c*4,4)}, {'0' if c == 0 else vr(P,4)}")
        A(f"v_mfma_f32_16x16x32_bf16 {vr(G,4)}, {vr(x+c*4,4)}, {vr(x+c*4,4)}, {'0' if c == 0 else vr(G,4)}")
    def ktile(x, P, G, first_wait):
        for c in range(4):
            A(f"s_waitcnt lgkmcnt({first_wait-c})")
            scale_a(x + c*4)
            if c > 0: mf(x, P, G, c-1)
            scale_b(x + c*4)
        A("s_nop 1"); mf(x, P, G, 3)
    def vmf(sl, b, a0):
        r = VX + b*4
        A(f"v_mfma_f32_4x4x4_16b_bf16 {vr(a0,4)}, {vr(AREG+2*sl,2)}, {vr(r,2)}, {vr(a0,4)} cbsz:2 abid:{b}")
        A(f"v_mfma_f32_4x4x4_16b_bf16 {vr(a0+4,4)}, {vr(AREG+2*sl,2)}, {vr(r+2,2)}, {vr(a0+4,4)} cbsz:2 abid:{b}")
    def vtile(sl):
        for b in range(4): vmf(sl, b, ACC + (b & 1)*8)
    def unp4():
        A(f"v_lshlrev_b32 {v(T)}, 16, {v(T+4)}\nv_and_b32 {v(T+1)}, {sMASK}, {v(T+4)}\nv_lshlrev_b32 {v(T+2)}, 16, {v(T+5)}\nv_and_b32 {v(T+3)}, {sMASK}, {v(T+5)}")
    def rnd4():
        A(f"v_cvt_pk_bf16_f32 {v(T+4)}, {v(T)}, {v(T+1)}\nv_cvt_pk_bf16_f32 {v(T+5)}, {v(T+2)}, {v(T+3)}")
        unp4()
    def phi(P, Sq, d0, d1):
        A(f"v_cvt_pk_bf16_f32 {v(T+6)}, {Sq}, {Sq}")
        A(f"v_cvt_pk_bf16_f32 {v(T+4)}, {v(P)}, {v(P+1)}\nv_cvt_pk_bf16_f32 {v(T+5)}, {v(P+2)}, {v(P+3)}")
        A(f"v_and_b32 {v(T+6)}, {sMASK}, {v(T+6)}")
        unp4()
        for i in range(4): A(f"v_fma_f32 {v(T+i)}, {v(T+6)}, -0.5, {v(T+i)}")
        rnd4()
        A(f"v_pk_mul_f32 {vr(T,2)}, {vr(T,2)}, {sL2E}\nv_pk_mul_f32 {vr(T+2,2)}, {vr(T+2,2)}, {sL2E}")
        for i in range(4): A(f"v_exp_f32 {v(T+i)}, {v(T+i)}")
        rnd4()
        A(f"v_pk_mul_f32 {vr(T,2)}, {vr(T,2)}, {sISM}\nv_pk_mul_f32 {vr(T+2,2)}, {vr(T+2,2)}, {sISM}")
        rnd4()
        A(f"v_pk_add_f32 {vr(T,2)}, {vr(T,2)}, {sEPS}\nv_pk_add_f32 {vr(T+2,2)}, {vr(T+2,2)}, {sEPS}")
        A(f"v_cvt_pk_bf16_f32 {d0}, {v(T)}, {v(T+1)}\nv_cvt_pk_bf16_f32 {d1}, {v(T+2)}, {v(T+3)}")
    def elementwise():
        a, b = v(T+8), v(T+9)
        A(f"v_and_b32 {a}, {v(GA)}, {vM[0]}\nv_and_b32 {b}, {v(GB)}, {vM[0]}")
        for r in range(1, 4):
            A(f"v_and_or_b32 {a}, {v(GA+r)}, {vM[r]}, {a}\nv_and_or_b32 {b}, {v(GB+r)}, {vM[r]}, {b}")
        for r in range(2): A(f"v_permlane32_swap_b32 {v(PA+r)}, {v(PB+r)}")
        A(f"v_permlane32_swap_b32 {a}, {b}\nv_or_b32 {a}, {a}, {b}\nv_mov_b32 {b}, {a}")
        for r in range(2, 4): A(f"v_permlane32_swap_b32 {v(PA+r)}, {v(PB+r)}")
        A(f"v_permlane16_swap_b32 {a}, {b}\nv_or_b32 {a}, {a}, {b}")
        phi(PA, a, v(T+10), v(T+11))
        w, t, ua, ub = v(T+12), v(T+13), v(T+14), v(T+15)
        A(f"v_dot2_f32_bf16 {w}, {v(T+10)}, {vPQ[0]}, 0\nv_dot2_f32_bf16 {w}, {v(T+11)}, {vPQ[1]}, {w}")
        A(f"s_nop 2\nv_mov_b32 {t}, {w}\ns_nop 1\nv_permlane16_swap_b32 {w}, {t}\nv_add_f32 {w}, {w}, {t}")
        A(f"v_cvt_pk_bf16_f32 {w}, {w}, {w}\nv_mov_b32 {t}, {w}\nv_and_b32 {ua}, {sMASK}, {w}\nv_add_f32 {vDEN}, {vDEN}, {ua}")
        A(f"v_permlane32_swap_b32 {w}, {t}\ns_nop 1")
        for g in range(4):
            A(f"v_mov_b32_dpp {ua}, {w} quad_perm:[{g},{g},{g},{g}] row_mask:{1<<g:#x} bank_mask:0xf")
            A(f"v_mov_b32_dpp {ub}, {t} quad_perm:[{g},{g},{g},{g}] row_mask:{1<<g:#x} bank_mask:0xf")
        A(f"v_and_b32 {v(AREG)}, {ua}, {vMA[0]}\nv_and_b32 {v(AREG+1)}, {ua}, {vMA[1]}\nv_and_b32 {v(AREG+2)}, {ub}, {vMA[0]}\nv_and_b32 {v(AREG+3)}, {ub}, {vMA[1]}")
    def addrs(k=True):
        if k:
            A(f"v_add_u32 {vKA[0]}, {sKS}, {vRD0}\nv_xor_b32 {vKA[1]}, 64, {vKA[0]}\nv_xor_b32 {vKA[2]}, 0x80, {vKA[0]}\nv_xor_b32 {vKA[3]}, 64, {vKA[2]}")
            A(f"s_add_u32 {sKS}, {sKS}, 16384\ns_cmp_eq_u32 {sKS}, {VBASE}\ns_cselect_b32 {sKS}, 0, {sKS}")
        A(f"v_add_u32 {vVA}, {sVS}, {vV0}")
        A(f"s_add_u32 {sVS}, {sVS}, 16384\ns_cmp_eq_u32 {sVS}, {2*VBASE}\ns_cselect_b32 {sVS}, {VBASE}, {sVS}")
    def vreads():
        for b in range(4): A(f"ds_read_b128 {vr(VX+b*4,4)}, {vVA} offset:{b*1024}")
    def pad(k, over=True):
        if TOUCH: A((f"s_branch L_skip{k}\n" if over else "") + f"L_pad{k}:\ns_branch L_consumer\n" + (f"L_skip{k}:" if over else ""))

    addrs()
    A("s_barrier")
    for c in range(4): A(f"ds_read_b128 {vr(OM+c*4,4)}, {v(T+8)} offset:{c*64}")
    for c in range(4): A(f"ds_read_b128 {vr(KX+c*4,4)}, {v(T+9)} offset:{c*64}")
    ktile(KX, PA, GA, 3)
    A("s_nop 7")
    phi(PA, v(GA), vPQ[0], vPQ[1])
    stamp(2)
    A("s_branch L_entry")
    A(f"L_setflag:\ns_waitcnt vmcnt(0)\nv_mov_b32 {v(T)}, 1\ns_mov_b64 exec, 1\nglobal_store_dword {vF}, {v(T)}, {sFLG} sc1\ns_mov_b64 exec, -1\ns_branch L_flagset")
    if HAND and CLRIT >= 0:
        A(f"L_clear:\nv_mov_b32 {v(VX)}, -1\nv_mov_b32 {v(VX+1)}, -1\nv_mov_b32 {v(VX+2)}, -1\nv_mov_b32 {v(VX+3)}, -1"); clear(); A("s_branch L_cleared")
    A(f"L_poll:\ns_mov_b64 exec, 1\nglobal_load_dword {vF}, {vF}, {sFLG} sc1\ns_mov_b64 exec, -1\ns_branch L_polled")
    A(".p2align 12")
    pad(0, False)
    A("L_loop:")
    for sl in range(2):
        addrs()
        if sl == 1: pad(1)
        A("s_barrier")
        if sl == 0: A("L_entry:")
        for c in range(4): A(f"ds_read_b128 {vr(KX+c*4,4)}, {vKA[c]}")
        vreads()
        ktile(KX, PA if sl == 0 else PB, GA if sl == 0 else GB, 7)
        A(f"s_cmp_eq_u32 {sIT}, 0\ns_waitcnt lgkmcnt(0)\ns_cbranch_scc1 L_novt{sl}")
        vtile(sl)
        A(f"L_novt{sl}:")
    pad(2)
    A("s_nop 7")
    elementwise()
    if HAND and CLRIT >= 0: A(f"s_cmp_eq_u32 {sIT}, s56\ns_cbranch_scc1 L_clear\nL_cleared:")
    if HAND: A(f"s_cmp_eq_u32 {sIT}, {sSETF}\ns_cbranch_scc1 L_setflag")
    A("L_flagset:")
    if HAND: A(f"s_cmp_eq_u32 {sIT}, {sPOLL}\ns_cbranch_scc1 L_poll")
    A("L_polled:")
    A(f"s_add_u32 {sIT}, {sIT}, 1\ns_cmp_lt_u32 {sIT}, 16\ns_cbranch_scc1 L_loop")
    for sh in (8, 4, 2, 1):
        A(f"v_add_f32_dpp {vDEN}, {vDEN}, {vDEN} row_ror:{sh} row_mask:0xf bank_mask:0xf\ns_nop 1")
    A(f"s_lshl_b32 s37, {sCW}, 4\ns_add_u32 s37, s37, {DENLDS}\nv_lshl_add_u32 {v(T)}, {vG}, 2, s37\nds_write_b32 {v(T)}, {vDEN}")
    addrs(False)
    A(f"v_mov_b32 {v(T+14)}, 0\nv_mov_b32 {v(T+15)}, 1\ns_mov_b32 {sRANK}, 0")
    if not HAND: A("s_branch L_flagok")
    A(f"s_cmp_lg_u32 {sCW}, 0\ns_cbranch_scc1 L_flagok\ns_waitcnt vmcnt(0)")
    A(f"L_flagchk:\nv_readfirstlane_b32 s37, {vF}\ns_nop 3\ns_cmp_lg_u32 s37, 0\ns_cbranch_scc1 L_flagok")
    A(f"global_load_dword {vF}, {v(T+14)}, {sFLG} sc1\ns_waitcnt vmcnt(0)\ns_branch L_flagchk")
    pad(3, False)
    A("L_flagok:\ns_waitcnt lgkmcnt(0)\ns_barrier")
    def rank(): A(f"s_mov_b64 exec, 1\nglobal_atomic_add {vF}, {v(T+14)}, {v(T+15)}, s[16:17] sc0\ns_mov_b64 exec, -1")
    vreads()
    A(f"s_cmp_lg_u32 {sCW}, 0\ns_cbranch_scc1 L_norank")
    if EARLYRANK: rank()
    A(f"v_mov_b32 {v(T)}, {DENLDS}")
    for w in range(4): A(f"ds_read_b128 {vr(KX+4*w,4)}, {v(T)} offset:{w*16}")
    A("s_waitcnt lgkmcnt(0)")
    A("v_pk_add_f32 v[72:73], v[72:73], v[74:75]\nv_pk_add_f32 v[76:77], v[76:77], v[78:79]\nv_pk_add_f32 v[80:81], v[80:81], v[82:83]\nv_pk_add_f32 v[84:85], v[84:85], v[86:87]")
    A("v_pk_add_f32 v[72:73], v[72:73], v[76:77]\nv_pk_add_f32 v[80:81], v[80:81], v[84:85]\nv_pk_add_f32 v[72:73], v[72:73], v[80:81]")
    A("v_add_f32 v74, v72, v73\nv_mul_f32 v74, 0.5, v74\nv_min_u32 v74, -2, v74\nv_mov_b32 v75, 0")
    A(f"s_lshl_b32 s37, {sHEAD}, 8\ns_add_u32 s12, s12, s37\ns_addc_u32 s13, s13, 0")
    A(f"s_lshl_b32 s37, {sPART}, 10\nv_add_u32 {v(T+2)}, s37, {vFA}\nv_lshlrev_b32 {v(T+3)}, 2, v0\nv_lshlrev_b32 {v(T+4)}, 3, v0")
    A("L_norank:\ns_waitcnt lgkmcnt(0)")
    vtile(0)
    addrs(False)
    A(f"s_lshl_b32 s37, {sCW}, 10\nv_lshlrev_b32 {v(T)}, 5, {vN}\nv_lshl_add_u32 {v(T)}, {vG}, 3, {v(T)}\nv_add_u32 {v(T)}, s37, {v(T)}")
    for r in range(8): A(f"v_add_f32 {v(ACC+r)}, {v(ACC+r)}, {v(ACC+8+r)}")
    if EARLYRANK:
        A(f"s_cmp_lg_u32 {sCW}, 0\ns_cbranch_scc1 L_nork2\ns_waitcnt vmcnt(0)\nv_readfirstlane_b32 {sRANK}, {vF}\nL_nork2:")
    A("s_barrier")
    vreads()
    R = OM
    def slotloads():
        for w in range(4): A(f"global_load_dwordx4 {vr(R+4*w,4)}, {vFA}, s[16:17] offset:{w*1024} sc1")
    if EARLYRANK:
        A(f"s_cmp_lg_u32 {sRANK}, 3\ns_cbranch_scc1 L_nopre"); slotloads(); A("L_nopre:")
    elif HAND:
        A(f"s_cmp_lg_u32 {sCW}, 0\ns_cbranch_scc1 L_nopre"); rank(); slotloads(); A("L_nopre:")
    for b in range(4):
        A(f"s_waitcnt lgkmcnt({3-b})"); vmf(1, b, ACC)
    stamp(4)
    A("s_nop 4")
    for r in range(4): A(f"v_permlane32_swap_b32 {v(ACC+r)}, {v(ACC+4+r)}")
    for r in range(4): A(f"v_add_f32 {v(ACC+r)}, {v(ACC+r)}, {v(ACC+4+r)}")
    A("s_nop 0")
    for r in range(2): A(f"v_permlane16_swap_b32 {v(ACC+r)}, {v(ACC+2+r)}")
    for r in range(2): A(f"v_add_f32 {v(ACC+r)}, {v(ACC+r)}, {v(ACC+2+r)}")
    A(f"ds_write_b64 {v(T)}, {vr(ACC,2)}\ns_waitcnt lgkmcnt(0)\ns_barrier")
    stamp(5)
    A(f"s_cmp_lg_u32 {sCW}, 0\ns_cbranch_scc1 L_fin")
    for w in range(4): A(f"ds_read_b64 {vr(76+2*w,2)}, {v(T+4)} offset:{w*1024}")
    if not EARLYRANK and HAND: A(f"s_waitcnt vmcnt(4)\nv_readfirstlane_b32 {sRANK}, {vF}")
    A("s_waitcnt lgkmcnt(0)")
    A("v_pk_add_f32 v[76:77], v[76:77], v[78:79]\nv_pk_add_f32 v[80:81], v[80:81], v[82:83]\nv_pk_add_f32 v[72:73], v[76:77], v[80:81]")
    A("v_min_u32 v72, -2, v72\nv_min_u32 v73, -2, v73")
    if HAND:
        A(f"s_cmp_eq_u32 {sRANK}, 3\ns_cbranch_scc1 L_last")
        A(f"global_store_dwordx4 {v(T+2)}, v[72:75], s[16:17] sc1\ns_branch L_fin")
    else:
        A(f"global_store_dwordx4 {v(T+2)}, v[72:75], s[16:17] sc1\ns_waitcnt vmcnt(0)")
        A(f"s_mov_b64 exec, 1\nglobal_atomic_add {vF}, {v(T+14)}, {v(T+15)}, {sFLG} sc0\ns_waitcnt vmcnt(0)\ns_mov_b64 exec, -1")
        A(f"v_readfirstlane_b32 {sRANK}, {vF}\ns_nop 3\ns_cmp_lg_u32 {sRANK}, 3\ns_cbranch_scc1 L_fin")
    A("L_reload:"); slotloads()
    A("L_last:")
    stamp(6)
    A("s_waitcnt vmcnt(0)")
    for k in range(4):
        A(f"s_cmp_lg_u32 {sPART}, {k}\ns_cbranch_scc1 L_np{k}\nv_mov_b32 {v(R+4*k)}, v72\nv_mov_b32 {v(R+4*k+1)}, v73\nv_mov_b32 {v(R+4*k+2)}, v74\nL_np{k}:")
    A(f"v_max3_u32 v76, {v(R)}, {v(R+1)}, {v(R+2)}\nv_max3_u32 v77, {v(R+4)}, {v(R+5)}, {v(R+6)}\nv_max3_u32 v78, {v(R+8)}, {v(R+9)}, {v(R+10)}\nv_max3_u32 v79, {v(R+12)}, {v(R+13)}, {v(R+14)}")
    A(f"v_max3_u32 v76, v76, v77, v78\nv_max_u32 v76, v76, v79\nv_cmp_eq_u32 vcc, -1, v76")
    A(f"v_add_f32 v80, {v(R+2)}, {v(R+6)}\nv_add_f32 v82, {v(R+10)}, {v(R+14)}\ns_cbranch_vccnz L_reload")
    A(f"v_add_f32 v80, v80, v82\nv_add_f32 v80, s44, v80\nv_rcp_f32 v80, v80")
    A(f"v_pk_add_f32 {vr(R,2)}, {vr(R,2)}, {vr(R+4,2)}\nv_pk_add_f32 {vr(R+8,2)}, {vr(R+8,2)}, {vr(R+12,2)}\nv_pk_add_f32 v[72:73], {vr(R,2)}, {vr(R+8,2)}")
    A("v_mul_f32 v72, v72, v80\nv_mul_f32 v73, v73, v80\nv_cvt_pk_bf16_f32 v72, v72, v73")
    A(f"global_store_dword {v(T+3)}, v72, s[12:13]")
    A("L_fin:")
    if MST:
        A("s_waitcnt vmcnt(0)\ns_memrealtime s[74:75]\ns_load_dwordx2 s[16:17], s[0:1], 48")
        A(f"s_mul_i32 s19, s2, 5\ns_add_u32 s19, s19, {sWAVE}\ns_lshl_b32 s19, s19, 6")
        A("s_waitcnt lgkmcnt(0)\ns_add_u32 s16, s16, 0x10000000\ns_addc_u32 s17, s17, 0\nv_mov_b32 v1, s19\ns_mov_b64 exec, 1")
        for i in range(4):
            A(f"v_mov_b32 v4, s{60+4*i}\nv_mov_b32 v5, s{61+4*i}\nv_mov_b32 v6, s{62+4*i}\nv_mov_b32 v7, s{63+4*i}\nglobal_store_dwordx4 v1, v[4:7], s[16:17] offset:{16*i}\ns_nop 1")
    A("L_end:\ns_endpgm")
    A(f""".section .rodata,"a"
.p2align 6
.amdhsa_kernel standalone__linear_kernel_rfa__decode_kernel
  .amdhsa_next_free_vgpr {NV}
  .amdhsa_next_free_sgpr 80
  .amdhsa_accum_offset {NV}
  .amdhsa_group_segment_fixed_size 0
  .amdhsa_kernarg_size 56
  .amdhsa_user_sgpr_count 2
  .amdhsa_user_sgpr_kernarg_segment_ptr 1
  .amdhsa_system_sgpr_workgroup_id_x 1
.end_amdhsa_kernel""")
    return "\n".join(L) + "\n"
if __name__ == "__main__":
    kw = {}
    for x in sys.argv[2:]:
        k, val = x.split("=")
        kw[k] = int(val) if (val.lstrip("-").isdigit() and k not in ("WIN", "LOOSE", "STRICT")) else val.replace("+", " ")
    open(sys.argv[1], "w").write(gen(**kw))
```

```python
import sys, struct
def f2u(x): return struct.unpack("<I", struct.pack("<f", x))[0]
HEADER = """; Kernarg layout for this problem (56 bytes, ptrs only, base s[0:1]):
"""
def gen(FLAGS="nt", MST=0, WIN="21", TOUCH=1, PRIO=3, PBITS="14_18", GB_=15, SETIT=2, MAPX=1):
    L = []; A = L.append
    NWG = 256; LIMIT = 0x200000
    RING = 98304; DENLDS = 98304; OMLDS = 98368; WLDS = OMLDS + 3072
    wins = [int(c) for c in str(WIN).split(",")]
    pb = [int(x) for x in PBITS.split("_")]
    smask = sum(1 << b for b in range(14, 21) if b not in pb and b != GB_)
    A(HEADER + f"; @launch grid=({NWG},1,1) block=(320,1,1) lds={WLDS + 16384}")
    A('.amdgcn_target "amdgcn-amd-amdhsa--gfx950"\n.text\n.globl standalone__linear_kernel_rfa__decode_kernel\n.p2align 12\n.p2align 8\n.type standalone__linear_kernel_rfa__decode_kernel,@function\nstandalone__linear_kernel_rfa__decode_kernel:')
    sWAVE, sHEAD, sPART = "s3", "s18", "s19"
    SRD, OSRD = "s[20:23]", "s[28:31]"
    vDMA = ["v1", "v2", "v3", "v4"]; vVoff = "v9"
    vN, vG = "v120", "v121"
    def v(i): return f"v{i}"
    def vr(i, n): return f"v[{i}:{i+n-1}]"
    def stamp(k):
        if MST: A(f"s_memrealtime s[{60+2*k}:{61+2*k}]")

    A(f"s_cmp_ge_u32 s2, {NWG}\ns_cbranch_scc1 L_end")
    stamp(0)
    A("s_load_dwordx8 s[4:11], s[0:1], 0")
    A(f"v_lshrrev_b32 {vG}, 6, v0\nv_and_b32 v0, 63, v0")
    A(f"v_and_b32 {vN}, 15, v0\nv_readfirstlane_b32 {sWAVE}, {vG}\nv_lshrrev_b32 {vG}, 4, v0")
    if MAPX:
        A("; head = 2*(wg>>3) + (bit0 ^ bit1 of wg), part = (wg>>1)&3")
        A(f"s_lshr_b32 s37, s2, 1\ns_and_b32 {sPART}, s37, 3\ns_xor_b32 s37, s37, s2\ns_and_b32 s37, s37, 1\ns_lshr_b32 {sHEAD}, s2, 3\ns_lshl1_add_u32 {sHEAD}, {sHEAD}, s37")
    else:
        A(f"s_lshr_b32 {sHEAD}, s2, 2\ns_and_b32 {sPART}, s2, 3")
    A(f"v_xor_b32 {vDMA[0]}, {vG}, {vN}\nv_lshlrev_b32 {vDMA[0]}, 4, {vDMA[0]}")
    A(f"s_cmp_lg_u32 {sWAVE}, 0\ns_cbranch_scc1 " + ("L_cdisp" if TOUCH else "L_consumer"))
    sO = [["s32", "s33", "s34", "s35"], ["s40", "s41", "s42", "s43"]]
    sM = [["s44", "s45", "s46", "s47"], ["s52", "s53", "s54", "s55"]]
    sP, sCNT, sPB = "s58", "s56", "s57"
    A(f"v_lshl_add_u32 {vDMA[0]}, {vG}, 8, {vDMA[0]}")
    A(f"s_and_b32 {sPB}, {sPART}, 1\ns_lshl_b32 {sPB}, {sPB}, {pb[0]}\ns_lshr_b32 s38, {sPART}, 1\ns_lshl_b32 s38, s38, {pb[1]}\ns_or_b32 {sPB}, {sPB}, s38")
    A(f"s_mov_b32 s22, {LIMIT}\ns_mov_b32 s23, 0x20000\ns_lshl_b32 s37, {sHEAD}, 21\ns_mov_b32 {sP}, 0\ns_mov_b32 {sCNT}, 0")
    A(f"v_xor_b32 {vDMA[1]}, 64, {vDMA[0]}\nv_xor_b32 {vDMA[2]}, 0x80, {vDMA[0]}\nv_xor_b32 {vDMA[3]}, 64, {vDMA[2]}")
    A(f"s_mov_b32 {sM[0][0]}, 0\ns_movk_i32 {sM[0][1]}, 0x1000\ns_movk_i32 {sM[0][2]}, 0x2000\ns_movk_i32 {sM[0][3]}, 0x3000\ns_mov_b32 {sO[0][0]}, {sPB}")
    for t in range(1, 4): A(f"s_add_u32 {sO[0][t]}, {sPB}, {sM[0][t]}")
    A("s_waitcnt lgkmcnt(0)")
    A("s_add_u32 s20, s6, s37\ns_addc_u32 s21, s7, 0")
    def group(k):
        for n in range(16):
            pc, t = n // 4, n % 4
            A(f"s_mov_b32 m0, {sM[k][t]}\ns_waitcnt vmcnt({wins[n % len(wins)] - 1})")
            A(f"buffer_load_dwordx4 {vDMA[pc]}, {SRD}, {sO[k][t]} offen offset:{pc*1024} {FLAGS} lds")
    A("L_lloop:")
    group(0)
    for t in range(4): A(f"s_add_u32 {sO[1][t]}, {sO[0][t]}, {1 << GB_}\ns_add_u32 {sM[1][t]}, {sM[0][t]}, 0x4000")
    A(f"s_cmp_eq_u32 {sP}, 0\ns_cbranch_scc1 L_lstart\nL_lb:")
    group(1)
    A(f"s_or_b32 {sCNT}, {sCNT}, {(~smask) & 0xffffffff:#x}\ns_add_u32 {sCNT}, {sCNT}, 1\ns_and_b32 {sCNT}, {sCNT}, {smask:#x}\ns_or_b32 {sO[0][0]}, {sCNT}, {sPB}")
    A(f"s_add_u32 {sM[0][0]}, {sM[0][0]}, 0x8000\ns_cmp_eq_u32 {sM[0][0]}, {RING}\ns_cselect_b32 {sM[0][0]}, 0, {sM[0][0]}")
    for t in range(1, 4): A(f"s_add_u32 {sO[0][t]}, {sO[0][0]}, {t*4096}\ns_add_u32 {sM[0][t]}, {sM[0][0]}, {t*4096}")
    A(f"s_add_u32 {sP}, {sP}, 1\ns_cmp_eq_u32 {sP}, 16\ns_cbranch_scc1 L_lswitch\ns_cmp_eq_u32 {sP}, 1\ns_cbranch_scc0 L_lbar\ns_waitcnt vmcnt(16)\nL_lbar:\ns_barrier")
    if MST:
        for pp, r in ((5, 66), (13, 64), (21, 70), (27, 72)):
            A(f"s_cmp_lg_u32 {sP}, {pp}\ns_cbranch_scc1 L_nost_{pp}\ns_memrealtime s[{r}:{r+1}]\nL_nost_{pp}:")
    A(f"s_cmp_lt_u32 {sP}, 32\ns_cbranch_scc1 L_lloop")
    A("s_waitcnt vmcnt(16)\ns_barrier\ns_waitcnt vmcnt(0)")
    stamp(4)
    A("s_barrier")
    if MST:
        A(f"s_getreg_b32 {sP}, hwreg(HW_REG_XCC_ID)\ns_and_b32 {sP}, {sP}, 15\ns_add_u32 {sP}, {sP}, 1\ns_add_u32 s62, s60, {sP}\ns_addc_u32 s63, s61, 0\ns_branch L_fin")
    else:
        A("s_endpgm")
    A(f"L_lswitch:\ns_add_u32 s20, s8, s37\ns_addc_u32 s21, s9, 0")
    for pc in range(4): A(f"v_lshlrev_b32 {vDMA[pc]}, 4, v0")
    A("s_branch L_lbar")
    A(f"L_lstart:\ns_mov_b32 s28, s10\ns_mov_b32 s29, s11\ns_movk_i32 s30, 2048\ns_mov_b32 s31, 0x20000\ns_mov_b32 m0, {OMLDS}\nv_lshlrev_b32 {vVoff}, 4, v0")
    A(f"buffer_load_dwordx4 {vVoff}, {OSRD}, 0 offen lds\nbuffer_load_dwordx4 {vVoff}, {OSRD}, 0 offen offset:1024 lds")
    A(f"s_lshl_b32 s38, {sHEAD}, 8\ns_add_u32 s48, s4, s38\ns_addc_u32 s49, s5, 0\ns_movk_i32 s50, 256\ns_mov_b32 s51, 0x20000\ns_mov_b32 m0, {OMLDS+2048}")
    A(f"s_setprio {PRIO}" if PRIO else "s_nop 0")
    A(f"buffer_load_dwordx4 {vVoff}, s[48:51], 0 offen lds")
    A("s_branch L_lb")
    if TOUCH:
        A("; consumers enter through pads spread over the main-loop code so that it is fetched while they are idle")
        A(f"L_cdisp:\ns_cmp_eq_u32 {sWAVE}, 1\ns_cbranch_scc1 L_pad0\ns_cmp_eq_u32 {sWAVE}, 2\ns_cbranch_scc1 L_pad1\ns_cmp_eq_u32 {sWAVE}, 3\ns_cbranch_scc1 L_pad2\ns_branch L_pad3")

    sSC = "s[34:35]"; sMASK = "s36"; sL2E = "s[38:39]"; sISM = "s[42:43]"; sEPS = "s[44:45]"; sFLG = "s[54:55]"
    sCW, sSL, sIT, sSETF, sRANK = "s59", "s32", "s41", "s53", "s47"
    vRD0 = "v5"; vKA = ["v6", "v7", "v8", "v19"]; vMA = ["v10", "v11"]; vM = ["v12", "v13", "v14", "v15"]; vDEN = "v16"; vPQ = ["v17", "v18"]
    AREG, PA, PB, GA, GB, ACC, T, KX, KY, OM = 20, 24, 28, 32, 36, 40, 56, 72, 88, 104
    vVA, vV0, vF, vFA, vWW, vWR = "v122", "v123", "v124", "v125", "v126", "v127"
    NV = 128
    A("L_consumer:")
    A("s_load_dwordx4 s[12:15], s[0:1], 32\ns_load_dwordx2 s[16:17], s[0:1], 48")
    A(f"s_sub_u32 {sCW}, {sWAVE}, 1\ns_lshl_b32 s37, {sCW}, 12")
    A(f"v_lshl_add_u32 {vRD0}, {vN}, 8, {vDMA[0]}\nv_add_u32 {vRD0}, s37, {vRD0}")
    A(f"v_lshlrev_b32 {vVoff}, 4, v0\nv_add_u32 {vV0}, s37, {vVoff}\nv_add_u32 {vFA}, 1024, {vVoff}")
    A(f"s_add_u32 s37, s37, {WLDS}\nv_lshl_add_u32 {vWW}, v0, 2, s37\nv_and_b32 {vWR}, 12, v0\nv_add_u32 {vWR}, {vWR}, {vG}\nv_lshl_add_u32 {vWR}, {vWR}, 2, s37")
    A(f"v_and_b32 {v(T)}, 7, v0\nv_lshlrev_b32 {v(T)}, 8, {v(T)}\nv_lshlrev_b32 {v(T+1)}, 4, {vG}\nv_add_u32 {v(T)}, {v(T)}, {v(T+1)}")
    A(f"v_add_u32 {v(T+8)}, {OMLDS}, {v(T)}\nv_add_u32 {v(T+9)}, {OMLDS+2048}, {v(T+1)}")
    sc = f2u(128.0 ** -0.25); l2e = f2u(1.4426950408889634); ism = f2u(8.0 ** -0.5); eps = f2u(1e-6)
    A(f"s_mov_b32 s34, {sc:#x}\ns_mov_b32 s35, s34\ns_mov_b32 {sMASK}, 0xffff0000\ns_mov_b32 s38, {l2e:#x}\ns_mov_b32 s39, s38")
    A(f"s_mov_b32 s42, {ism:#x}\ns_mov_b32 s43, s42\ns_mov_b32 s44, {eps:#x}\ns_mov_b32 s45, s44")
    A(f"s_mov_b32 {sSL}, 0\ns_mov_b32 {sIT}, 0")
    A(f"s_lshl_b32 s37, {sHEAD}, 13\ns_lshl_b32 s46, {sHEAD}, 2")
    A(f"s_or_b32 s47, {sPART}, {sCW}\ns_cmp_eq_u32 s47, 0\ns_cselect_b32 {sSETF}, {SETIT}, -1")
    A(f"v_mov_b32 {vF}, 0\nv_mov_b32 {v(KY)}, -1\nv_mov_b32 {v(KY+1)}, -1\nv_mov_b32 {v(KY+2)}, -1\nv_mov_b32 {v(KY+3)}, -1")
    A("s_waitcnt lgkmcnt(0)")
    A("s_add_u32 s16, s16, s37\ns_addc_u32 s17, s17, 0\ns_add_u32 s54, s14, s46\ns_addc_u32 s55, s15, 0")
    A(f"s_cmp_lg_u32 s47, 0\ns_cbranch_scc1 L_noclr")
    for w in range(4): A(f"global_store_dwordx4 {vFA}, {vr(KY,4)}, s[16:17] offset:{w*1024} sc1")
    A(f"s_mov_b64 exec, 1\nglobal_store_dword {vF}, {vF}, s[16:17] sc1\ns_mov_b64 exec, -1")
    A("L_noclr:")
    if MST: A("s_mov_b64 s[70:71], 0\ns_mov_b64 s[72:73], 0\ns_mov_b64 s[62:63], 0\ns_mov_b64 s[66:67], 0")
    A(f"v_and_b32 {v(T+2)}, 1, v0\nv_lshlrev_b32 {v(T+2)}, 4, {v(T+2)}\nv_mov_b32 {v(T+3)}, 0xffff\nv_lshlrev_b32 {v(T+2)}, {v(T+2)}, {v(T+3)}\nv_and_b32 {v(T+3)}, 2, v0\nv_cmp_ne_u32 vcc, 0, {v(T+3)}\ns_nop 1")
    A(f"v_cndmask_b32_e64 {vMA[0]}, {v(T+2)}, 0, vcc\nv_cndmask_b32_e64 {vMA[1]}, 0, {v(T+2)}, vcc")
    A(f"v_lshlrev_b32 {v(T+2)}, 2, {vG}\nv_sub_u32 {v(T+2)}, {vN}, {v(T+2)}")
    for r in range(4):
        A(f"v_cmp_eq_u32 vcc, {r}, {v(T+2)}\ns_nop 1\nv_cndmask_b32_e64 {vM[r]}, 0, -1, vcc")
    A(f"v_mov_b32 {vDEN}, 0")
    for i in range(16): A(f"v_mov_b32 {v(ACC+i)}, 0")

    def scale_a(x):
        for i in range(4):
            A(f"v_lshlrev_b32 {v(T+2*i)}, 16, {v(x+i)}\nv_and_b32 {v(T+2*i+1)}, {sMASK}, {v(x+i)}")
    def scale_b(x):
        for i in range(4): A(f"v_pk_mul_f32 {vr(T+2*i,2)}, {vr(T+2*i,2)}, {sSC}")
        for i in range(4): A(f"v_cvt_pk_bf16_f32 {v(x+i)}, {v(T+2*i)}, {v(T+2*i+1)}")
    def mf(x, P, G, c):
        A(f"v_mfma_f32_16x16x32_bf16 {vr(P,4)}, {vr(OM+c*4,4)}, {vr(x+c*4,4)}, {'0' if c == 0 else vr(P,4)}")
        A(f"v_mfma_f32_16x16x32_bf16 {vr(G,4)}, {vr(x+c*4,4)}, {vr(x+c*4,4)}, {'0' if c == 0 else vr(G,4)}")
    def slabs(lst, first_wait):
        prev = None
        for i, (x, P, G, c) in enumerate(lst):
            A(f"s_waitcnt lgkmcnt({first_wait-i})")
            scale_a(x + c*4)
            if prev: mf(*prev)
            scale_b(x + c*4)
            prev = (x, P, G, c)
        A("s_nop 1"); mf(*prev)
    def vmf(X, sl, b, a0):
        r = X + b*4
        A(f"v_mfma_f32_4x4x4_16b_bf16 {vr(a0,4)}, {vr(AREG+2*sl,2)}, {vr(r,2)}, {vr(a0,4)} cbsz:2 abid:{b}")
        A(f"v_mfma_f32_4x4x4_16b_bf16 {vr(a0+4,4)}, {vr(AREG+2*sl,2)}, {vr(r+2,2)}, {vr(a0+4,4)} cbsz:2 abid:{b}")
    def unp4():
        A(f"v_lshlrev_b32 {v(T)}, 16, {v(T+4)}\nv_and_b32 {v(T+1)}, {sMASK}, {v(T+4)}\nv_lshlrev_b32 {v(T+2)}, 16, {v(T+5)}\nv_and_b32 {v(T+3)}, {sMASK}, {v(T+5)}")
    def rnd4():
        A(f"v_cvt_pk_bf16_f32 {v(T+4)}, {v(T)}, {v(T+1)}\nv_cvt_pk_bf16_f32 {v(T+5)}, {v(T+2)}, {v(T+3)}")
        unp4()
    def phi(P, Sq, d0, d1):
        A(f"v_cvt_pk_bf16_f32 {v(T+6)}, {Sq}, {Sq}")
        A(f"v_cvt_pk_bf16_f32 {v(T+4)}, {v(P)}, {v(P+1)}\nv_cvt_pk_bf16_f32 {v(T+5)}, {v(P+2)}, {v(P+3)}")
        A(f"v_and_b32 {v(T+6)}, {sMASK}, {v(T+6)}")
        unp4()
        for i in range(4): A(f"v_fma_f32 {v(T+i)}, {v(T+6)}, -0.5, {v(T+i)}")
        rnd4()
        A(f"v_pk_mul_f32 {vr(T,2)}, {vr(T,2)}, {sL2E}\nv_pk_mul_f32 {vr(T+2,2)}, {vr(T+2,2)}, {sL2E}")
        for i in range(4): A(f"v_exp_f32 {v(T+i)}, {v(T+i)}")
        rnd4()
        A(f"v_pk_mul_f32 {vr(T,2)}, {vr(T,2)}, {sISM}\nv_pk_mul_f32 {vr(T+2,2)}, {vr(T+2,2)}, {sISM}")
        rnd4()
        A(f"v_pk_add_f32 {vr(T,2)}, {vr(T,2)}, {sEPS}\nv_pk_add_f32 {vr(T+2,2)}, {vr(T+2,2)}, {sEPS}")
        A(f"v_cvt_pk_bf16_f32 {d0}, {v(T)}, {v(T+1)}\nv_cvt_pk_bf16_f32 {d1}, {v(T+2)}, {v(T+3)}")
    def rot(): A(f"s_add_u32 {sSL}, {sSL}, 0x8000\ns_cmp_eq_u32 {sSL}, {RING}\ns_cselect_b32 {sSL}, 0, {sSL}")
    def pad(k, over=True):
        if TOUCH: A((f"s_branch L_skip{k}\n" if over else "") + f"L_pad{k}:\ns_branch L_consumer\n" + (f"L_skip{k}:" if over else ""))

    A("s_barrier")
    for c in range(4): A(f"ds_read_b128 {vr(OM+c*4,4)}, {v(T+8)} offset:{c*64}")
    for c in range(4): A(f"ds_read_b128 {vr(KX+c*4,4)}, {v(T+9)} offset:{c*64}")
    slabs([(KX, PA, GA, c) for c in range(4)], 3)
    A("s_nop 7")
    phi(PA, v(GA), vPQ[0], vPQ[1])
    stamp(2)
    A("s_branch L_kloop")
    A(f"L_setflag:\ns_waitcnt vmcnt(0)\nv_mov_b32 {v(T)}, 1\ns_mov_b64 exec, 1\nglobal_store_dword {vF}, {v(T)}, {sFLG} sc1\ns_mov_b64 exec, -1\ns_branch L_flagset")
    A(".p2align 12")
    pad(0, False)
    A("; ---- K steps")
    A("L_kloop:")
    A(f"v_add_u32 {vKA[0]}, {sSL}, {vRD0}\nv_xor_b32 {vKA[1]}, 64, {vKA[0]}\nv_xor_b32 {vKA[2]}, 0x80, {vKA[0]}\nv_xor_b32 {vKA[3]}, 64, {vKA[2]}")
    rot()
    A("s_barrier")
    for c in range(4): A(f"ds_read_b128 {vr(KX+c*4,4)}, {vKA[c]}")
    for c in range(4): A(f"ds_read_b128 {vr(KY+c*4,4)}, {vKA[c]} offset:16384")
    n0 = len(L)
    slabs([(KX, PA, GA, c) for c in range(4)] + [(KY, PB, GB, c) for c in range(4)], 7)
    if TOUCH:
        body = "\n".join(L[n0:]).split("\n"); del L[n0:]
        cut = [i for i, x in enumerate(body) if x.startswith("s_waitcnt lgkmcnt(2)")][0]
        A("\n".join(body[:cut])); pad(1); A("\n".join(body[cut:]))
    a, b = v(T+8), v(T+9)
    A(f"v_and_b32 {a}, {v(GA)}, {vM[0]}")
    for r in range(1, 4): A(f"v_and_or_b32 {a}, {v(GA+r)}, {vM[r]}, {a}")
    A("s_nop 3")
    A(f"v_and_b32 {b}, {v(GB)}, {vM[0]}")
    for r in range(1, 4): A(f"v_and_or_b32 {b}, {v(GB+r)}, {vM[r]}, {b}")
    for r in range(2): A(f"v_permlane32_swap_b32 {v(PA+r)}, {v(PB+r)}")
    A(f"v_permlane32_swap_b32 {a}, {b}\nv_or_b32 {a}, {a}, {b}\nv_mov_b32 {b}, {a}")
    for r in range(2, 4): A(f"v_permlane32_swap_b32 {v(PA+r)}, {v(PB+r)}")
    A(f"v_permlane16_swap_b32 {a}, {b}\nv_or_b32 {a}, {a}, {b}")
    phi(PA, a, v(T+10), v(T+11))
    w, t = v(T+12), v(T+13)
    A(f"v_dot2_f32_bf16 {w}, {v(T+10)}, {vPQ[0]}, 0\nv_dot2_f32_bf16 {w}, {v(T+11)}, {vPQ[1]}, {w}")
    A(f"s_cmp_eq_u32 {sIT}, {sSETF}\ns_cbranch_scc1 L_setflag\nL_flagset:\ns_add_u32 {sIT}, {sIT}, 1")
    A(f"v_mov_b32 {t}, {w}\ns_nop 1\nv_permlane16_swap_b32 {w}, {t}\nv_add_f32 {w}, {w}, {t}")
    A(f"v_cvt_pk_bf16_f32 {w}, {w}, {w}\nds_write_b32 {vWW}, {w}\nv_and_b32 {t}, {sMASK}, {w}\nv_add_f32 {vDEN}, {vDEN}, {t}\nv_add_u32 {vWW}, 256, {vWW}")
    A(f"s_cmp_lt_u32 {sIT}, 16\ns_cbranch_scc1 L_kloop")
    for sh in (8, 4, 2, 1):
        A(f"v_add_f32_dpp {vDEN}, {vDEN}, {vDEN} row_ror:{sh} row_mask:0xf bank_mask:0xf\ns_nop 1")
    A(f"s_lshl_b32 s37, {sCW}, 4\ns_add_u32 s37, s37, {DENLDS}\nv_lshl_add_u32 {v(T)}, {vG}, 2, s37\nds_write_b32 {v(T)}, {vDEN}")
    pad(2)
    def wprep():
        A(f"ds_read_b32 {v(T)}, {vWR}\nds_read_b32 {v(T+1)}, {vWR} offset:128\nv_add_u32 {vVA}, {sSL}, {vV0}\nv_add_u32 {vWR}, 256, {vWR}")
        rot()
        A(f"s_waitcnt lgkmcnt(0)\nv_and_b32 {v(AREG)}, {v(T)}, {vMA[0]}\nv_and_b32 {v(AREG+1)}, {v(T)}, {vMA[1]}\nv_and_b32 {v(AREG+2)}, {v(T+1)}, {vMA[0]}\nv_and_b32 {v(AREG+3)}, {v(T+1)}, {vMA[1]}")
    def vreads(X, off):
        for b_ in range(4): A(f"ds_read_b128 {vr(X+b_*4,4)}, {vVA} offset:{off + b_*1024}")
    A("L_vloop:")
    wprep()
    A("s_barrier")
    vreads(KX, 0); vreads(KY, 16384)
    for i in range(8):
        A(f"s_waitcnt lgkmcnt({7-i})"); vmf(KX if i < 4 else KY, i // 4, i & 3, ACC + (i & 1)*8)
    A(f"s_add_u32 {sIT}, {sIT}, 1\ns_cmp_lt_u32 {sIT}, 30\ns_cbranch_scc1 L_vloop")
    A(f"s_cmp_eq_u32 {sIT}, 31\ns_cbranch_scc1 L_vtail")
    A(f"s_cmp_lg_u32 {sCW}, 0\ns_cbranch_scc1 L_vloop\ns_mov_b64 exec, 1\nglobal_load_dword {vF}, {vF}, {sFLG} sc1\ns_mov_b64 exec, -1\ns_branch L_vloop")
    pad(3, False)
    A("L_vtail:")
    wprep()
    A(f"v_mov_b32 {v(T+14)}, 0\nv_mov_b32 {v(T+15)}, 1")
    A(f"s_cmp_lg_u32 {sCW}, 0\ns_cbranch_scc1 L_flagok")
    DT = 0
    A(f"v_mov_b32 {v(T)}, {DENLDS}")
    for w_ in range(4): A(f"ds_read_b128 {vr(OM+4*w_,4)}, {v(T)} offset:{w_*16}")
    A(f"s_lshl_b32 s37, {sHEAD}, 8\ns_add_u32 s12, s12, s37\ns_addc_u32 s13, s13, 0")
    A(f"s_lshl_b32 s37, {sPART}, 10\nv_add_u32 {v(T+2)}, s37, {vFA}\nv_lshlrev_b32 {v(T+3)}, 2, v0\nv_lshlrev_b32 {v(T+4)}, 3, v0")
    A("s_waitcnt lgkmcnt(0)")
    O = OM
    A(f"v_pk_add_f32 {vr(O,2)}, {vr(O,2)}, {vr(O+2,2)}\nv_pk_add_f32 {vr(O+4,2)}, {vr(O+4,2)}, {vr(O+6,2)}\nv_pk_add_f32 {vr(O+8,2)}, {vr(O+8,2)}, {vr(O+10,2)}\nv_pk_add_f32 {vr(O+12,2)}, {vr(O+12,2)}, {vr(O+14,2)}")
    A(f"v_pk_add_f32 {vr(O,2)}, {vr(O,2)}, {vr(O+4,2)}\nv_pk_add_f32 {vr(O+8,2)}, {vr(O+8,2)}, {vr(O+12,2)}\nv_pk_add_f32 {vr(O,2)}, {vr(O,2)}, {vr(O+8,2)}")
    Q = PA
    A(f"v_add_f32 {v(Q+2)}, {v(O)}, {v(O+1)}\nv_mul_f32 {v(Q+2)}, 0.5, {v(Q+2)}\nv_min_u32 {v(Q+2)}, -2, {v(Q+2)}\nv_mov_b32 {v(Q+3)}, 0")
    A("s_waitcnt vmcnt(0)")
    A(f"L_flagchk:\nv_readfirstlane_b32 s37, {vF}\ns_nop 3\ns_cmp_lg_u32 s37, 0\ns_cbranch_scc1 L_flagok")
    A(f"global_load_dword {vF}, {v(T+14)}, {sFLG} sc1\ns_waitcnt vmcnt(0)\ns_branch L_flagchk")
    A("L_flagok:\ns_barrier")
    vreads(KX, 0)
    A(f"s_lshl_b32 s37, {sCW}, 10\nv_lshlrev_b32 {v(T)}, 5, {vN}\nv_lshl_add_u32 {v(T)}, {vG}, 3, {v(T)}\nv_add_u32 {v(T)}, s37, {v(T)}")
    for i in range(4):
        A(f"s_waitcnt lgkmcnt({3-i})"); vmf(KX, 0, i, ACC + (i & 1)*8)
    A("s_nop 4")
    for r in range(8): A(f"v_add_f32 {v(ACC+r)}, {v(ACC+r)}, {v(ACC+8+r)}")
    A("s_barrier")
    vreads(KY, 16384)
    R = OM
    def slotloads():
        for w_ in range(4): A(f"global_load_dwordx4 {vr(R+4*w_,4)}, {vFA}, s[16:17] offset:{w_*1024} sc1")
    A(f"s_cmp_lg_u32 {sCW}, 0\ns_cbranch_scc1 L_nopre")
    A(f"s_mov_b64 exec, 1\nglobal_atomic_add {vF}, {v(T+14)}, {v(T+15)}, s[16:17] sc0\ns_mov_b64 exec, -1")
    slotloads(); A("L_nopre:")
    for i in range(4):
        A(f"s_waitcnt lgkmcnt({3-i})"); vmf(KY, 1, i, ACC)
    stamp(4)
    A("s_nop 4")
    for r in range(4): A(f"v_permlane32_swap_b32 {v(ACC+r)}, {v(ACC+4+r)}")
    for r in range(4): A(f"v_add_f32 {v(ACC+r)}, {v(ACC+r)}, {v(ACC+4+r)}")
    A("s_nop 0")
    for r in range(2): A(f"v_permlane16_swap_b32 {v(ACC+r)}, {v(ACC+2+r)}")
    for r in range(2): A(f"v_add_f32 {v(ACC+r)}, {v(ACC+r)}, {v(ACC+2+r)}")
    A(f"ds_write_b64 {v(T)}, {vr(ACC,2)}\ns_waitcnt lgkmcnt(0)\ns_barrier")
    stamp(5)
    A(f"s_cmp_lg_u32 {sCW}, 0\ns_cbranch_scc1 L_fin")
    for w_ in range(4): A(f"ds_read_b64 {vr(76+2*w_,2)}, {v(T+4)} offset:{w_*1024}")
    A(f"s_waitcnt vmcnt(4)\nv_readfirstlane_b32 {sRANK}, {vF}")
    A("s_waitcnt lgkmcnt(0)")
    A(f"v_pk_add_f32 v[76:77], v[76:77], v[78:79]\nv_pk_add_f32 v[80:81], v[80:81], v[82:83]\nv_pk_add_f32 {vr(Q,2)}, v[76:77], v[80:81]")
    A(f"v_min_u32 {v(Q)}, -2, {v(Q)}\nv_min_u32 {v(Q+1)}, -2, {v(Q+1)}")
    A(f"s_cmp_eq_u32 {sRANK}, 3\ns_cbranch_scc1 L_last")
    A(f"global_store_dwordx4 {v(T+2)}, {vr(Q,4)}, s[16:17] sc1\ns_branch L_fin")
    A("L_reload:"); slotloads()
    A("L_last:")
    stamp(6)
    A("s_waitcnt vmcnt(0)")
    for k in range(4):
        A(f"s_cmp_lg_u32 {sPART}, {k}\ns_cbranch_scc1 L_np{k}\nv_mov_b32 {v(R+4*k)}, {v(Q)}\nv_mov_b32 {v(R+4*k+1)}, {v(Q+1)}\nv_mov_b32 {v(R+4*k+2)}, {v(Q+2)}\nL_np{k}:")
    A(f"v_max3_u32 v76, {v(R)}, {v(R+1)}, {v(R+2)}\nv_max3_u32 v77, {v(R+4)}, {v(R+5)}, {v(R+6)}\nv_max3_u32 v78, {v(R+8)}, {v(R+9)}, {v(R+10)}\nv_max3_u32 v79, {v(R+12)}, {v(R+13)}, {v(R+14)}")
    A(f"v_max3_u32 v76, v76, v77, v78\nv_max_u32 v76, v76, v79\nv_cmp_eq_u32 vcc, -1, v76")
    A(f"v_add_f32 v80, {v(R+2)}, {v(R+6)}\nv_add_f32 v82, {v(R+10)}, {v(R+14)}\ns_cbranch_vccnz L_reload")
    A(f"v_add_f32 v80, v80, v82\nv_add_f32 v80, s44, v80\nv_rcp_f32 v80, v80")
    A(f"v_pk_add_f32 {vr(R,2)}, {vr(R,2)}, {vr(R+4,2)}\nv_pk_add_f32 {vr(R+8,2)}, {vr(R+8,2)}, {vr(R+12,2)}\nv_pk_add_f32 v[72:73], {vr(R,2)}, {vr(R+8,2)}")
    A("v_mul_f32 v72, v72, v80\nv_mul_f32 v73, v73, v80\nv_cvt_pk_bf16_f32 v72, v72, v73")
    A(f"global_store_dword {v(T+3)}, v72, s[12:13]")
    A("L_fin:")
    if MST:
        A("s_waitcnt vmcnt(0)\ns_memrealtime s[74:75]\ns_load_dwordx2 s[16:17], s[0:1], 48")
        A(f"s_mul_i32 s19, s2, 5\ns_add_u32 s19, s19, {sWAVE}\ns_lshl_b32 s19, s19, 6")
        A("s_waitcnt lgkmcnt(0)\ns_add_u32 s16, s16, 0x10000000\ns_addc_u32 s17, s17, 0\nv_mov_b32 v1, s19\ns_mov_b64 exec, 1")
        for i in range(4):
            A(f"v_mov_b32 v4, s{60+4*i}\nv_mov_b32 v5, s{61+4*i}\nv_mov_b32 v6, s{62+4*i}\nv_mov_b32 v7, s{63+4*i}\nglobal_store_dwordx4 v1, v[4:7], s[16:17] offset:{16*i}\ns_nop 1")
    A("L_end:\ns_endpgm")
    A(f""".section .rodata,"a"
.p2align 6
.amdhsa_kernel standalone__linear_kernel_rfa__decode_kernel
  .amdhsa_next_free_vgpr {NV}
  .amdhsa_next_free_sgpr 80
  .amdhsa_accum_offset {NV}
  .amdhsa_group_segment_fixed_size 0
  .amdhsa_kernarg_size 56
  .amdhsa_user_sgpr_count 2
  .amdhsa_user_sgpr_kernarg_segment_ptr 1
  .amdhsa_system_sgpr_workgroup_id_x 1
.end_amdhsa_kernel""")
    return "\n".join(L) + "\n"
if __name__ == "__main__":
    kw = {}
    for x in sys.argv[2:]:
        k, val = x.split("=")
        kw[k] = int(val) if (val.lstrip("-").isdigit() and k not in ("WIN",)) else val.replace("+", " ")
    open(sys.argv[1], "w").write(gen(**kw))
```
